```python
import torch

def _softmax(x, axis=-1):
    return torch.softmax(x, dim=axis)
def _gelu(x):
    return torch.nn.functional.gelu(x, approximate="tanh")
def _silu(x):
    return torch.nn.functional.silu(x)
def _sigmoid(x):
    return torch.sigmoid(x)
def _layernorm(x, axis=-1, eps=1e-5):
    m = x.mean(dim=axis, keepdim=True)
    v = x.var(dim=axis, keepdim=True, unbiased=False)
    return (x - m) / torch.sqrt(v + eps)
def _scatter_add(tgt, idx, src, axis=0):
    return tgt.clone().index_add_(axis, idx, src)
def _segment_sum(src, seg, n):
    out = torch.zeros((n,) + src.shape[1:], dtype=src.dtype)
    return out.index_add_(0, seg, src)
def _pad(x, pw):
    flat = tuple(v for pair in reversed(pw) for v in pair)
    return torch.nn.functional.pad(x, flat)

kernel_name = 'concat_heads__mha_block_cached__gqa_block_cached__near_ridge'

def setup_inputs():

    _w = (lambda a: (lambda t: t.to(torch.bfloat16) if t.is_floating_point() else t)(torch.as_tensor(a)))
    def _A_setup():
        B, Sq, D = 8, 240, 576
        H, Sk, Dh = 32, 1024, 128
        return {
            "x": _w((lambda *s: torch.randn(*s, dtype=torch.bfloat16) * 0.8)(B, Sq, D)),
            "k_cache": _w((lambda *s: torch.randn(*s, dtype=torch.bfloat16) * 0.8)(B, H, Sk, Dh)),
            "v_cache": _w((lambda *s: torch.randn(*s, dtype=torch.bfloat16) * 0.05)(B, H, Sk, Dh)),
            "wq": _w((lambda *s: torch.randn(*s, dtype=torch.bfloat16) * 0.8)(D, H * Dh) * (D ** -0.5)),
            "wo": _w((lambda *s: torch.randn(*s, dtype=torch.bfloat16) * 0.05)(H * Dh, D) * ((H * Dh) ** -0.5)),
        }
    _A_in = _A_setup()

    def _B_setup():
        B, Sq, D = 8, 240, 576
        Hq, Hkv, Sk, Dh = 32, 32, 1024, 128
        assert Hq % Hkv == 0, (Hq, Hkv)
        return {
            "x": _w((lambda *s: torch.randn(*s, dtype=torch.bfloat16) * 0.8)(B, Sq, D)),
            "k_cache": _w((lambda *s: torch.randn(*s, dtype=torch.bfloat16) * 0.8)(B, Hkv, Sk, Dh)),
            "v_cache": _w((lambda *s: torch.randn(*s, dtype=torch.bfloat16) * 0.05)(B, Hkv, Sk, Dh)),
            "wq": _w((lambda *s: torch.randn(*s, dtype=torch.bfloat16) * 0.8)(D, Hq * Dh) * (D ** -0.5)),
            "wo": _w((lambda *s: torch.randn(*s, dtype=torch.bfloat16) * 0.05)(Hq * Dh, D) * ((Hq * Dh) ** -0.5)),
        }
    _B_in = _B_setup()

    return {
        "A_x": _A_in["x"],
        "A_k_cache": _A_in["k_cache"],
        "A_v_cache": _A_in["v_cache"],
        "A_wq": _A_in["wq"],
        "A_wo": _A_in["wo"],
        "B_x": _B_in["x"],
        "B_k_cache": _B_in["k_cache"],
        "B_v_cache": _B_in["v_cache"],
        "B_wq": _B_in["wq"],
        "B_wo": _B_in["wo"],
    }

def reference(A_x, A_k_cache, A_v_cache, A_wq, A_wo, B_x, B_k_cache, B_v_cache, B_wq, B_wo):
    def _A_ref(x, k_cache, v_cache, wq, wo):
        B, Sq, D = x.shape
        H, Dh = 32, 128
        q = (lambda x, *d: x.permute(*d))((x @ wq).reshape(B, Sq, H, Dh), 0, 2, 1, 3)
        scores = torch.einsum("bhqd,bhkd->bhqk", q, k_cache) * (Dh ** -0.5)
        p = _softmax(scores, axis=-1)
        o = torch.einsum("bhqk,bhkd->bhqd", p, v_cache)
        return (lambda x, *d: x.permute(*d))(o, 0, 2, 1, 3).reshape(B, Sq, H * Dh) @ wo

    def _B_ref(x, k_cache, v_cache, wq, wo):
        B, Sq, D = x.shape
        Hq, Dh = 32, 128
        Hkv = k_cache.shape[1]
        rep = Hq // Hkv
        q = (lambda x, *d: x.permute(*d))((x @ wq).reshape(B, Sq, Hq, Dh), 0, 2, 1, 3)
        k = (lambda x, n, axis: torch.repeat_interleave(x, n, dim=axis))(k_cache, rep, axis=1)
        v = (lambda x, n, axis: torch.repeat_interleave(x, n, dim=axis))(v_cache, rep, axis=1)
        scores = torch.einsum("bhqd,bhkd->bhqk", q, k) * (Dh ** -0.5)
        p = _softmax(scores, axis=-1)
        o = torch.einsum("bhqk,bhkd->bhqd", p, v)
        return (lambda x, *d: x.permute(*d))(o, 0, 2, 1, 3).reshape(B, Sq, Hq * Dh) @ wo

    a = _A_ref(A_x, A_k_cache, A_v_cache, A_wq, A_wo)
    b = _B_ref(B_x, B_k_cache, B_v_cache, B_wq, B_wo)
    return torch.concatenate([a, b], axis=-1)
```

```python
import sys
NAME = 'concat_heads__mha_block_cached__gqa_block_cached__near_ridge'
opt = dict(qswap=0, ost=0, wst=0, xnt=0, wnt=0, stamp=0, opnt=0, forcesafe=0, map1=0)
for a in sys.argv[2:]:
    k, v = a.split('='); assert k in opt, k; opt[k] = int(v)

POL = ['', ' nt', ' sc1', ' sc0 sc1']
vr = lambda b, n: f'v[{b}:{b+n-1}]'
ar = lambda b, n: f'a[{b}:{b+n-1}]'
MF = 'v_mfma_f32_16x16x32_bf16'
L = []
def e(s): L.append('    ' + s)
def lab(s): L.append(s + ':')

class Cnt:
    def __init__(self): self.q = []
    def add(self, tag): self.q.append(tag)
    def need(self, tag):
        idx = [i for i, t in enumerate(self.q) if t == tag]
        if not idx: return None
        n = len(self.q) - 1 - idx[-1]
        self.q = self.q[idx[-1] + 1:]
        return n
VM, LG = Cnt(), Cnt()
def wait(vm=None, lg=None, lg0=False):
    p = []
    if vm is not None:
        n = VM.need(vm)
        if n is not None: p.append(f'vmcnt({min(n,63)})')
    if lg0:
        LG.q = []; p.append('lgkmcnt(0)')
    elif lg is not None:
        n = LG.need(lg)
        if n is not None: p.append(f'lgkmcnt({min(n,15)})')
    if p: e('s_waitcnt ' + ' '.join(p))

WS_O = 0
WS_WF = 16 * 1966080
WS_STAMP = 0x4000000

sK, sV, sX, sW, sO, sWO, sWF, sST = 8, 12, 16, 20, 24, 28, 64, 68
sKM = lambda i: 32 + i
sVM = lambda i: 36 + i
sP, sHP, sB, sWV = 40, 41, 42, 43
sKO, sVO = 44, 45
sXO, sWQO = 46, 47
sW8 = 48
sBLK, sLOOP, sSAFE, sOH = 49, 50, 51, 52
sFAIL = 54
sT = 56
KA = lambda ks: 8 + ks
VA = lambda dt: 12 + dt
KD = lambda m: 20 + m
VD = lambda m: 24 + (m & 1)
OA = 26
S = lambda buf, kt, qt: 32 + buf * 32 + (qt * 2 + kt) * 4
P = lambda buf, qt: 96 + buf * 16 + qt * 4
Q = lambda qt, ks: 160 + (qt * 4 + ks) * 4
NM = lambda qt: 224 + qt * 4
def PARK(i):
    if i < 16: return ('v', 240 + i)
    if i < 20: return ('v', 28 + i - 16)
    return ('a', 212 + i - 20)
O = lambda dt, qt: (dt * 4 + qt) * 4
KF = lambda kt, ks: 128 + (kt * 4 + ks) * 4
VF = lambda d4, ks: 160 + (d4 * 2 + ks) * 4
LS = lambda qt: 192 + qt * 4
ONES = 208
XF = lambda buf, qt, ks: 32 + buf * 32 + (qt * 2 + ks) * 4
WFR = lambda T, ks: 96 + (T & 3) * 8 + ks * 4
XD = lambda m: 128 + m
WD = lambda m: 136 + m
WA = lambda hi, t: 144 + hi * 8 + t
XA = lambda ks: 6 + ks
ACC = lambda T, qt: (((T + 8) & 15) * 4 + qt) * 4
XSLOT = [32768, 0]
WSLOT = [98304, 65536, 131072]
WOLDS = 49152

def dma_k(m): return f'buffer_load_dwordx4 v{KD(m)}, s[{sK}:{sK+3}], s{sKO} offen offset:{m*1024} nt lds'
def dma_v(m): return f'buffer_load_dwordx4 v{VD(m)}, s[{sV}:{sV+3}], s{sVO} offen offset:{m*1024} nt lds'

def srd(s, lo, hi, off, size):
    if off is None:
        e(f's_mov_b32 s{s}, s{lo}'); e(f's_mov_b32 s{s+1}, s{hi}')
    else:
        e(f's_add_u32 s{s}, s{lo}, {off}'); e(f's_addc_u32 s{s+1}, s{hi}, 0')
    e(f's_mov_b32 s{s+2}, {size}'); e(f's_mov_b32 s{s+3}, 0x20000')

def stamp(i):
    if opt['stamp']:
        e(f's_memtime s[{72+4*i}:{73+4*i}]'); e(f's_memrealtime s[{74+4*i}:{75+4*i}]')

def stamp_out(n, wgreg, wvreg, base):
    if not opt['stamp']: return
    e('s_waitcnt lgkmcnt(0)')
    e(f's_lshl_b32 s3, {wgreg}, 2'); e(f's_add_u32 s3, s3, {wvreg}'); e('s_lshl_b32 s3, s3, 6'); e(f's_add_u32 s3, s3, {base}')
    e('v_mov_b32 v8, s3')
    for i in range(n):
        e(f'v_mov_b32 v{10+2*i}, s{72+4*i}'); e(f'v_mov_b32 v{11+2*i}, s{74+4*i}')
    e('s_mov_b64 exec, 1')
    for i in range(n):
        e(f'buffer_store_dwordx2 v[{10+2*i}:{11+2*i}], v8, s[{sST}:{sST+3}], 0 offen offset:{8*i}')
    e('s_waitcnt vmcnt(0)')

def setup1():
    e('s_cmp_ge_u32 s2, 256')
    e('s_cbranch_scc1 L_end')
    stamp(0)
    e('s_and_b32 s3, s2, 7'); e('s_lshr_b32 s4, s2, 3')
    e(f's_lshr_b32 s{sP}, s3, 2')
    if opt['map1'] == 0:
        e('s_and_b32 s3, s3, 3'); e('s_lshl_b32 s3, s3, 2'); e('s_and_b32 s5, s4, 3'); e(f's_add_u32 s{sHP}, s3, s5')
        e(f's_lshr_b32 s{sB}, s4, 2')
    else:
        e('s_and_b32 s3, s3, 3'); e('s_lshl_b32 s3, s3, 1'); e('s_and_b32 s5, s4, 1'); e(f's_add_u32 s{sB}, s3, s5')
        e(f's_lshr_b32 s{sHP}, s4, 1')
    e(f's_mul_i32 s3, s{sP}, 40')
    e('s_add_u32 s6, s0, s3'); e('s_addc_u32 s7, s1, 0')
    e('s_load_dwordx8 s[56:63], s[6:7], 0')
    e('s_lshr_b32 s3, s2, 7'); e('s_mul_i32 s3, s3, 40')
    e('s_add_u32 s52, s0, s3'); e('s_addc_u32 s53, s1, 0')
    e('s_load_dwordx2 s[4:5], s[52:53], 32')
    e('s_load_dwordx2 s[50:51], s[0:1], 96')
    e('v_lshrrev_b32 v1, 6, v0'); e('v_and_b32 v0, 63, v0'); e(f'v_readfirstlane_b32 s{sWV}, v1')
    e('v_and_b32 v1, 15, v0')
    e('v_lshrrev_b32 v2, 4, v0')
    e(f's_lshl_b32 s{sW8}, s{sWV}, 13')
    e(f's_mul_i32 s3, s{sWV}, {64*1152}')
    e('v_lshrrev_b32 v3, 3, v0'); e('v_mul_u32_u24 v3, 1152, v3'); e('v_add_u32 v3, s3, v3')
    e('v_and_b32 v4, 7, v0'); e('v_xor_b32 v4, v4, v2')
    e(f'v_lshl_add_u32 v{XD(0)}, v4, 4, v3'); e('v_xor_b32 v4, 4, v4'); e(f'v_lshl_add_u32 v{XD(1)}, v4, 4, v3')
    for m in range(7, 0, -1):
        e(f'v_add_u32 v{XD(m)}, {m*9216 - (m&3)*1024}, v{XD(m&1)}')
    e(f's_lshl_b32 s3, s{sWV}, 17')
    e('v_lshrrev_b32 v3, 5, v0'); e('v_lshl_add_u32 v5, v3, 13, s3')
    e('v_and_b32 v4, 31, v0')
    for m in range(8):
        if opt['qswap']:
            e(f'v_or_b32 v6, {((2*m)&3) | ((m>>2)<<2)}, v3'); e('v_lshlrev_b32 v6, 1, v6')
        else:
            e(f'v_or_b32 v6, {(2*m)&3}, v3'); e('v_lshlrev_b32 v6, 2, v6')
        e('v_xor_b32 v6, v6, v4'); e('v_lshl_add_u32 v6, v6, 4, v5')
        e(f'v_add_u32 v{WD(m)}, {m*16384 - (m&3)*1024}, v6')
    e('s_waitcnt lgkmcnt(0)')
    e(f's_mul_i32 s3, s{sB}, 276480'); srd(sX, 56, 57, 's3', 276480)
    e(f's_lshl_b32 s3, s{sHP}, 9'); srd(sW, 62, 63, 's3', 0)
    e(f's_sub_u32 s{sW+2}, {576*8192}, s3')
    e(f's_lshl_b32 s3, s{sB}, 5'); e(f's_lshl_b32 s53, s{sHP}, 1'); e('s_add_u32 s3, s3, s53'); e('s_lshl_b32 s3, s3, 18')
    srd(sK, 58, 59, 's3', 524288); srd(sV, 60, 61, 's3', 524288)
    e('s_and_b32 s3, s2, 127'); e('s_mul_i32 s3, s3, 36864'); srd(sWO, 4, 5, 's3', 36864)
    e('s_mul_i32 s3, s2, 36864'); e(f's_add_u32 s3, s3, {WS_WF}'); srd(sWF, 50, 51, 's3', 36864)
    e(f's_lshl_b32 s3, s{sP}, 3'); e(f's_add_u32 s3, s3, s{sB}'); e('s_mul_i32 s3, s3, 1966080'); srd(sO, 50, 51, 's3', 1966080)
    if opt['stamp']: srd(sST, 50, 51, WS_STAMP, 0x100000)
    e(f's_mov_b32 s{sSAFE}, {opt["forcesafe"]}')

def setup2():
    e('v_lshrrev_b32 v3, 1, v0'); e('v_and_b32 v3, 7, v3'); e('v_xor_b32 v3, v3, v2')
    e(f'v_lshl_add_u32 v4, v1, 7, s{sW8}')
    e(f'v_lshl_add_u32 v{XA(0)}, v3, 4, v4'); e('v_xor_b32 v3, 4, v3'); e(f'v_lshl_add_u32 v{XA(1)}, v3, 4, v4')
    e('v_bfe_u32 v3, v0, 2, 2')
    e('v_lshl_add_u32 v4, v2, 3, v3'); e('v_lshlrev_b32 v4, 9, v4'); e('v_add_u32 v4, 0x10000, v4')
    e('v_and_b32 v5, 3, v0')
    if opt['qswap']:
        e('v_lshl_add_u32 v4, v5, 3, v4')
        e('v_and_b32 v5, 1, v2'); e('v_lshl_or_b32 v3, v5, 2, v3')
        for t in range(8):
            e(f'v_xor_b32 v5, {t}, v3'); e(f'v_lshl_add_u32 v{WA(0,t)}, v5, 5, v4')
    else:
        e('v_lshl_add_u32 v4, v5, 4, v4')
        for t in range(4):
            e(f'v_xor_b32 v5, {t}, v3'); e(f'v_lshl_add_u32 v{WA(0,2*t)}, v5, 6, v4')
            e(f'v_add_u32 v{WA(0,2*t+1)}, 8, v{WA(0,2*t)}')
    for t in range(8): e(f'v_add_u32 v{WA(1,t)}, 0x8000, v{WA(0,t)}')
    if opt['qswap']:
        e('v_lshrrev_b32 v3, 1, v2'); e('v_and_b32 v4, 1, v2'); e('v_lshl_or_b32 v3, v4, 1, v3')
    else:
        e('v_mov_b32 v3, v2')
    for ks in range(4):
        e(f'v_or_b32 v4, {4*ks}, v3'); e('v_xor_b32 v4, v4, v1'); e('v_lshlrev_b32 v4, 4, v4')
        e(f'v_lshl_add_u32 v{KA(ks)}, v1, 8, v4')
    e('v_lshrrev_b32 v4, 2, v0')
    e('v_lshlrev_b32 v5, 8, v4'); e('v_and_b32 v3, 3, v0'); e('v_lshl_add_u32 v5, v3, 3, v5'); e('v_add_u32 v5, 0x10000, v5')
    e('v_and_b32 v4, 7, v4')
    for dt in range(8):
        e(f'v_xor_b32 v3, {dt}, v4'); e(f'v_lshl_add_u32 v{VA(dt)}, v3, 5, v5')
    e(f's_lshl_b32 s3, s{sWV}, 12')
    e('v_lshl_add_u32 v5, v2, 8, s3')
    for m in range(4):
        e(f'v_or_b32 v3, {4*m}, v2'); e('v_xor_b32 v3, v3, v1'); e(f'v_lshl_add_u32 v{KD(m)}, v3, 4, v5')
    for m in range(2):
        e(f'v_or_b32 v3, {4*m}, v2'); e('v_lshlrev_b32 v3, 1, v3'); e('v_xor_b32 v3, v3, v1'); e(f'v_lshl_add_u32 v{VD(m)}, v3, 4, v5')
    for g in range(4):
        e(f's_add_u32 s{sKM(g)}, s3, {g*16384}')
        e(f's_add_u32 s{sVM(g)}, s3, {65536 + ((g+2)&3)*16384}')
    e(f's_lshl_b32 s3, s{sWV}, 19'); e(f'v_lshl_add_u32 v{OA}, v0, 4, s3')

def x_dma(s, m):
    r = []
    if m & 3 == 0: r.append(('s', f's_add_u32 m0, s{sW8}, {XSLOT[s&1] + (m>>2)*4096}'))
    r.append(('g', f'buffer_load_dwordx4 v{XD(m)}, s[{sX}:{sX+3}], s{sXO} offen offset:{(m&3)*1024}{POL[opt["xnt"]]} lds', ('X', s)))
    if m == 7: r.append(('a', f's_add_u32 s{sXO}, s{sXO}, 128'))
    return r
def w_dma(s, m):
    r = []
    if m & 3 == 0: r.append(('s', f's_add_u32 m0, s{sW8}, {WSLOT[s%3] + (m>>2)*4096}'))
    r.append(('g', f'buffer_load_dwordx4 v{WD(m)}, s[{sW}:{sW+3}], s{sWQO} offen offset:{(m&3)*1024}{POL[opt["wnt"]]} lds', ('W', s)))
    if m == 7: r.append(('a', f's_add_u32 s{sWQO}, s{sWQO}, 524288'))
    return r
def kv_dma(kind, t, m):
    r = []
    if m == 0: r.append(('s', f's_mov_b32 m0, s{sKM(t) if kind == "K" else sVM(t)}'))
    r.append(('g', dma_k(m) if kind == 'K' else dma_v(m), (kind, t)))
    if m == 3:
        o = sKO if kind == 'K' else sVO
        r.append(('a', f's_add_u32 s{o}, s{o}, 16384'))
    return r
def wo_dma(i):
    r = []
    if i & 3 == 0:
        r.append(('s', f's_add_u32 m0, s56, {WOLDS + (i>>2)*4096}'))
        r.append(('s', f's_mov_b32 s57, {(i>>2)*4096}'))
    r.append(('g', f'buffer_load_dwordx4 v3, s[{sWO}:{sWO+3}], s57 offen offset:{(i&3)*1024} lds', ('WO', 0)))
    return r
def emit_dma_plain(items):
    for it in items:
        e(it[1])
        if it[0] == 's': e('s_nop 0')
        if it[0] == 'g': VM.add(it[2])
def wread(s, T, ks, h):
    sl = WSLOT[s % 3]
    hi = 0 if sl == 65536 else 1
    base = sl - 65536 - hi * 32768
    off = base + ks * 16384 + h * 2048 + (T >> 3) * 256
    assert off < 65536
    LG.add(('W', s, T))
    return f'ds_read_b64_tr_b16 {vr(WFR(T,ks)+2*h,2)}, v{WA(hi,T&7)} offset:{off}'
def xread(s, qt, ks):
    off = XSLOT[s & 1] + qt * 2048
    LG.add(('X', s))
    return f'ds_read_b128 {vr(XF(s&1,qt,ks),4)}, v{XA(ks)} offset:{off}'

def qproj():
    VM.q = []; LG.q = []
    e(f's_mov_b32 s{sXO}, 0'); e(f's_mov_b32 s{sWQO}, 0'); e(f's_mov_b32 s{sKO}, 0'); e(f's_mov_b32 s{sVO}, 0')
    for s in range(2):
        for m in range(8): emit_dma_plain(x_dma(s, m))
        for m in range(8): emit_dma_plain(w_dma(s, m))
    setup2()
    e(f's_mul_i32 s56, s{sWV}, 9216'); e('v_lshl_add_u32 v3, v0, 4, s56')
    wait(vm=('X', 0))
    for qt in range(4):
        for ks in range(2): e(xread(0, qt, ks))
    wait(vm=('W', 0)); e('s_barrier')
    stamp(1)
    for T in range(2):
        for ks in range(2):
            for h in range(2): e(wread(0, T, ks, h))
    for s in range(9):
        if s < 7:
            dm = [x_dma(s + 2, m) for m in range(8)] + [w_dma(s + 2, m) for m in range(8)]
        elif s == 7:
            dm = [kv_dma('K', 0, m) for m in range(4)] + [kv_dma('K', 1, m) for m in range(4)] + [kv_dma('V', 0, m) for m in range(4)]
        else:
            dm = [wo_dma(i) for i in range(9)] + [kv_dma('K', 2, m) for m in range(4)] + [kv_dma('V', 1, m) for m in range(4)]
        dpos = {}
        for n, it in enumerate(dm): dpos[8 * (n >> 1) + (4 if n & 1 == 0 else 6)] = it
        xpos = {8 * (6 + n) + 2: n for n in range(8)} if s < 8 else {}
        for g in range(128):
            T, qt, ks = g >> 3, (g >> 1) & 3, g & 1
            if g == 112 and s < 8:
                wait(vm=('W', s + 1), lg0=True); e('s_barrier')
            elif g & 7 == 0:
                if g == 0: wait(lg=('X', s))
                wait(lg=('W', s, T))
            if g in xpos and xpos[g] == 0: wait(vm=('X', s + 1))
            c = '0' if (s == 0 and ks == 0) else ar(ACC(T, qt), 4)
            e(f'{MF} {ar(ACC(T,qt),4)}, {vr(WFR(T,ks),4)}, {vr(XF(s&1,qt,ks),4)}, {c}')
            if (g & 7) < 2:
                T2, s2 = (T + 2) & 15, s + ((T + 2) >> 4)
                if s2 < 9:
                    for h in range(2): e(wread(s2, T2, g & 1, h))
            if g in xpos: e(xread(s + 1, xpos[g] >> 1, xpos[g] & 1))
            if g + 1 in dpos:
                for it in dpos[g + 1]:
                    if it[0] == 's': e(it[1])
            if g in dpos:
                for it in dpos[g]:
                    if it[0] == 'g': e(it[1]); VM.add(it[2])
            if g - 1 in dpos:
                for it in dpos[g - 1]:
                    if it[0] == 'a': e(it[1])
    stamp(2)
    e('s_mov_b32 s58, 0x3e0293ee'); e('s_mov_b32 s59, 0x3e0293ee')
    e('s_nop 4')
    def conv(T0, dst):
        n = 0
        for qt in range(4):
            for t in range(4):
                tb = 32 + (n & 1) * 8; n += 1
                for o in range(2):
                    for r in range(4): e(f'v_accvgpr_read_b32 v{tb+4*o+r}, a{ACC(T0+2*t+o,qt)+r}')
                for j in range(4): e(f'v_pk_mul_f32 {vr(tb+2*j,2)}, {vr(tb+2*j,2)}, s[58:59]')
                ds = [dst((qt*4+t)*4 + j) for j in range(4)]
                tmp = [d[1] if d[0] == 'v' else 48 + j for j, d in enumerate(ds)]
                order = [0, 2, 1, 3] if opt['qswap'] else [0, 1, 2, 3]
                for j in order: e(f'v_cvt_pk_bf16_f32 v{tmp[j]}, v{tb+2*j}, v{tb+2*j+1}')
                if opt['qswap']:
                    e('s_nop 0')
                    e(f'v_permlane16_swap_b32 v{tmp[0]}, v{tmp[2]}'); e(f'v_permlane16_swap_b32 v{tmp[1]}, v{tmp[3]}')
                for j, d in enumerate(ds):
                    if d[0] == 'a': e(f'v_accvgpr_write_b32 a{d[1]}, v{tmp[j]}')
    conv(0, lambda i: ('v', 160 + i))
    e('v_lshrrev_b32 v4, 2, v0'); e('v_mul_u32_u24 v4, 1152, v4'); e('v_and_b32 v5, 3, v0'); e('v_lshl_add_u32 v4, v5, 4, v4')
    e(f's_lshr_b32 s56, s{sWV}, 1'); e('s_lshl_b32 s56, s56, 6'); e(f's_and_b32 s57, s{sWV}, 1'); e('s_lshl_b32 s57, s57, 3')
    e('s_add_u32 s56, s56, s57'); e(f's_add_u32 s56, s56, {WOLDS}'); e('v_add_u32 v4, s56, v4')
    e(f's_lshl_b32 s56, s{sWV}, 10'); e('v_lshl_add_u32 v5, v0, 4, s56')
    wait(vm=('WO', 0)); e('s_barrier')
    for i in range(9):
        for h in range(2): e(f'ds_read_b64_tr_b16 {vr(96+4*i+2*h,2)}, v4 offset:{128*i + h*18432}')
    conv(8, PARK)
    e('s_waitcnt lgkmcnt(0)')
    for i in range(9):
        e(f's_mov_b32 s56, {i*4096}')
        e(f'buffer_store_dwordx4 {vr(96+4*i,4)}, v5, s[{sWF}:{sWF+3}], s56 offen{POL[opt["wst"]]}')
    e('v_mov_b32 v4, 0x3f803f80')
    for r in range(4): e(f'v_accvgpr_write_b32 a{ONES+r}, v4')

def qk(buf, kt, qt, ks, c0=False):
    c = ('0' if c0 else vr(NM(qt), 4)) if ks == 0 else vr(S(buf, kt, qt), 4)
    return f'{MF} {vr(S(buf,kt,qt),4)}, {ar(KF(kt,ks),4)}, {vr(Q(qt,ks),4)}, {c}'
def pv(pb, dt, qt, ks, first):
    c = '0' if (first and ks == 0) else ar(O(dt, qt), 4)
    return f'{MF} {ar(O(dt,qt),4)}, {ar(VF(dt&3,ks),4)}, {vr(P(pb+ks,qt),4)}, {c}'
def sm(pb, qt, ks, first):
    c = '0' if (first and ks == 0) else ar(LS(qt), 4)
    return f'{MF} {ar(LS(qt),4)}, {ar(ONES,4)}, {vr(P(pb+ks,qt),4)}, {c}'
def kread(unit, kt, ks): return f'ds_read_b128 {ar(KF(kt,ks),4)}, v{KA(ks)} offset:{(unit % 8) * 8192 + kt * 4096}'
def vread(tile, dt, ks, h): return f'ds_read_b64_tr_b16 {ar(VF(dt&3,ks)+2*h,2)}, v{VA(dt)} offset:{((tile + 2) % 4) * 16384 + (32*ks + 16*h) * 256}'
def xop(b, n):
    qt, kt, r = n >> 3, (n >> 2) & 1, n & 3
    return f'v_exp_f32 v{S(b,kt,qt)+r}, v{S(b,kt,qt)+r}'
def cop(u, n):
    qt, kt, r = n >> 2, (n >> 1) & 1, (n & 1) * 2
    return f'v_cvt_pk_bf16_f32 v{P(u&3,qt)+(n&3)}, v{S(u&1,kt,qt)+r}, v{S(u&1,kt,qt)+r+1}'

PLAN_A = ['dC', 'x', 'd', 'x', 'c', 'x', 'dd', 'g', 'x', 'c', 'x', 'dd', 'g', 'x', 'c', 'x', 'dd', 'g', 'x', 'c', 'x', '', 'g',
          'x', 'c', 'x', 'x', 'c', 'x', 'x', 'c', 'x', 'x', 'c', 'x', 'x']
PLAN_B = ['tc', 'x', 'tt', 'x', 'tc', 'x', 'tt', 'x', 'tc', 'x', 'tt', 'x', 'tc', 'x', 'tt', 'x', 'tc', 'x', 'tt', 'x', 'tc', 'x', 'x', 'c',
          'x', 'x', '', '', '', '', '', '']

def step(u, dopv=True, doqk=True, dosm=True, dovr=True, dma=None, first=False, spill=True, extra=None):
    b = u & 1; hh = u & 1; j = u >> 1
    pb = (2 * (j - 1)) & 3
    mf = []
    for d4 in range(4):
        for qt in range(4):
            for ks in range(2): mf.append(pv(pb, 4*hh + d4, qt, ks, first) if dopv else None)
    for qt in (2*hh, 2*hh+1):
        for ks in range(2): mf.append(sm(pb, qt, ks, first) if dopv else None)
    for kt in range(2):
        for qt in range(4):
            for ks in range(4): mf.append(qk(b ^ 1, kt, qt, ks) if doqk else None)
    plan = PLAN_A + PLAN_B
    cntx = ''.join(plan)
    assert len(PLAN_A) == 36 and len(PLAN_B) == 32
    assert [cntx.count(z) for z in 'xcdtg'] == [32, 15, 8, 16, 4]
    nx = nc = nd = nt_ = ng = 0
    vtile = (u + 1) // 2 - 1; vh = (u + 1) & 1
    korder = [(kt, ks) for kt in range(2) for ks in range(4)]
    vorder = [(d4, ks, h) for d4 in range(4) for ks in range(2) for h in range(2)]
    extra = list(extra or [])
    lastx = False
    for g in range(68):
        if g == 36 and doqk: e('s_waitcnt lgkmcnt(0)')
        if mf[g]: e(mf[g]); lastx = False
        nxt = plan[g + 1] if g + 1 < 68 else ''
        if 'g' in nxt and ng == 0 and dma: e(f's_mov_b32 m0, s{dma[1]}'); lastx = False
        for z in plan[g]:
            if z == 'x':
                if dosm: e(xop(b, nx)); lastx = True
                nx += 1
            elif z == 'c':
                assert nx >= 2 * nc + 2, (g, nx, nc)
                if dosm:
                    if lastx: e('s_nop 0')
                    e(cop(u, nc)); lastx = False
                nc += 1
            elif z == 'C':
                if spill: e(cop(u - 1, 15)); lastx = False
            elif z == 'd':
                if doqk: e(kread(u + 1, *korder[nd])); lastx = False
                nd += 1
            elif z == 't':
                if dovr: e(vread(vtile, 4 * vh + vorder[nt_][0], vorder[nt_][1], vorder[nt_][2])); lastx = False
                nt_ += 1
            elif z == 'g':
                if dma:
                    if not mf[g] and ng == 0: e('s_nop 0')
                    e(dma_k(ng) if dma[0] == 'k' else dma_v(ng)); lastx = False
                ng += 1
        if mf[g] and extra and not dosm and g >= 1:
            for _ in range(2):
                if extra: e(extra.pop(0))
        if g == 30 and dma:
            r = sKO if dma[0] == 'k' else sVO
            e(f's_add_u32 s{r}, s{r}, 16384')
    assert not extra

def first_step(dma):
    for kt in range(2):
        for ks in range(4): e(kread(0, kt, ks))
    e(f's_mov_b32 m0, s{dma[1]}'); e('s_nop 0')
    for m in range(4): e(dma_k(m))
    e(f's_add_u32 s{sKO}, s{sKO}, 16384')
    e('s_waitcnt lgkmcnt(0)')
    def mx(qt):
        a, b2 = S(0, 0, qt), S(0, 1, qt)
        t = 1 + qt
        return [f'v_max3_f32 v{t}, v{a}, v{a+1}, v{a+2}', f'v_max3_f32 v{t}, v{t}, v{a+3}, v{b2}',
                f'v_max3_f32 v{t}, v{t}, v{b2+1}, v{b2+2}', f'v_max3_f32 v{t}, v{t}, v{b2+3}, v{NM(qt)}']
    for qt in range(4):
        pend = mx(qt - 2) if qt >= 2 else []
        for kt in range(2):
            for ks in range(4):
                e(qk(0, kt, qt, ks, c0=True))
                if pend and ks & 1: e(pend.pop(0))
    for s_ in mx(2): e(s_)
    e('s_nop 3')
    for s_ in mx(3): e(s_)
    for sw in ('v_permlane16_swap_b32', 'v_permlane32_swap_b32'):
        for qt in range(4): e(f'v_mov_b32 v{NM(qt)}, v{1+qt}')
        e('s_nop 0')
        for qt in range(4): e(f'{sw} v{1+qt}, v{NM(qt)}')
        e('s_nop 0')
        for qt in range(4): e(f'v_max_f32 v{1+qt}, v{1+qt}, v{NM(qt)}')
    e(f's_cmp_eq_u32 s{sWV}, 3'); e('s_mov_b32 s56, 0xff800000'); e('s_cmov_b32 s56, 0x7149f2ca')
    e('v_max_f32 v4, s56, v4')
    for qt in range(4):
        for r in range(4): e(f'v_mul_f32 v{NM(qt)+r}, -1.0, v{1+qt}')
    for qt in range(4):
        for kt in range(2):
            for r in range(4): e(f'v_add_f32 v{S(0,kt,qt)+r}, v{S(0,kt,qt)+r}, v{NM(qt)}')

def iteration(i):
    e('s_waitcnt vmcnt(16) lgkmcnt(0)')
    e('s_barrier')
    dk, dv = ('k', sKM((i + 3) % 4)), ('v', sVM((i + 2) % 4))
    if i == 0:
        first_step(dk)
        step(0, dopv=False, dovr=False, dma=dv, spill=False)
    elif i == 1:
        step(1, dopv=False, dma=dk)
        e('s_waitcnt lgkmcnt(0)')
        step(2, dma=dv, first=True)
    elif i == 2:
        step(3, dma=dk, first=True)
        e('s_waitcnt lgkmcnt(0)')
        step(4, dma=dv)
    elif i == 16:
        mv = []
        for n in range(64):
            k, r = PARK(n)
            mv.append(f'v_mov_b32 v{160+n}, v{r}' if k == 'v' else f'v_accvgpr_read_b32 v{160+n}, a{r}')
        step(31, doqk=False)
        e('s_waitcnt lgkmcnt(0)')
        step(32, doqk=False, dosm=False)
        e('s_waitcnt lgkmcnt(0)')
        step(33, doqk=False, dosm=False, dovr=False, spill=False, extra=mv)
    else:
        step(2*i - 1, dma=dk)
        e('s_waitcnt lgkmcnt(0)')
        step(2*i, dma=dv)

def maxpass():
    e('v_and_b32 v1, 15, v0'); e('v_lshlrev_b32 v1, 4, v1'); e(f'v_xor_b32 v5, v{KA(0)}, v1')
    e(f's_lshl_b32 s56, s{sBLK}, 18'); e('s_mov_b32 s58, 0')
    lab('L_mp')
    e('s_add_u32 s57, s56, 4096')
    for kt in range(2):
        for ks in range(4):
            e(f'buffer_load_dwordx4 {ar(KF(kt,ks),4)}, v5, s[{sK}:{sK+3}], s{56+kt} offen offset:{ks*64}')
    e('s_waitcnt vmcnt(0)')
    for qt in range(4):
        for kt in range(2):
            for ks in range(4): e(qk(0, kt, qt, ks, c0=True))
    e('s_nop 7')
    for qt in range(4):
        a, b2 = S(0, 0, qt), S(0, 1, qt)
        t = NM(qt)
        e(f'v_max3_f32 v{t}, v{t}, v{a}, v{a+1}'); e(f'v_max3_f32 v{t}, v{t}, v{a+2}, v{a+3}')
        e(f'v_max3_f32 v{t}, v{t}, v{b2}, v{b2+1}'); e(f'v_max3_f32 v{t}, v{t}, v{b2+2}, v{b2+3}')
    e('s_add_u32 s56, s56, 8192'); e('s_add_u32 s58, s58, 1'); e('s_cmp_lt_u32 s58, 32'); e('s_cbranch_scc1 L_mp')

def attention():
    e(f's_mov_b32 s{sBLK}, 0'); e(f's_mov_b64 s[{sFAIL}:{sFAIL+1}], 0')
    e(f's_lshl_b32 s{sOH}, s{sHP}, 13')
    lab('L_block')
    for qt in range(4): e(f'v_mov_b32 v{NM(qt)}, 0xff800000')
    e(f's_cmp_eq_u32 s{sSAFE}, 0'); e('s_cbranch_scc1 L_nomp')
    maxpass()
    lab('L_nomp')
    iteration(0); iteration(1); iteration(2)
    e(f's_mov_b32 s{sLOOP}, 0')
    e('s_branch L_it3')
    L.append('.p2align 6')
    lab('L_loop')
    iteration(4); iteration(5); iteration(6)
    lab('L_it3')
    iteration(7)
    e(f's_add_u32 s{sLOOP}, s{sLOOP}, 1'); e(f's_cmp_lt_u32 s{sLOOP}, 4'); e('s_cbranch_scc1 L_loop')
    iteration(16)
    e('s_nop 7')
    for qt in range(4): e(f'v_accvgpr_read_b32 v{1+qt}, a{LS(qt)}')
    e('s_mov_b32 s56, 0x4e800000')
    for qt in range(4):
        e(f'v_cmp_ngt_f32 vcc, s56, v{1+qt}')
        e(f'v_rcp_f32 v{1+qt}, v{1+qt}')
        e(f's_or_b64 s[{sFAIL}:{sFAIL+1}], s[{sFAIL}:{sFAIL+1}], vcc')
    n = 0
    for qt in range(4):
        e(f's_add_u32 s57, s{sOH}, {qt*131072}')
        for t in range(4):
            tb = 32 + (n & 1) * 8
            for j in range(8): e(f'v_accvgpr_read_b32 v{tb+j}, a{O(2*t+(j>>2),qt)+(j&3)}')
            for j in range(8): e(f'v_mul_f32 v{tb+j}, v{tb+j}, v{1+qt}')
            d = 48 + 4 * (n & 3); n += 1
            for j in range(4): e(f'v_cvt_pk_bf16_f32 v{d+j}, v{tb+2*j}, v{tb+2*j+1}')
            e(f'buffer_store_dwordx4 {vr(d,4)}, v{OA}, s[{sO}:{sO+3}], s57 offen offset:{t*1024}{POL[opt["ost"]]}')
    e(f's_add_u32 s{sOH}, s{sOH}, 4096')
    if opt['stamp']:
        e(f's_cmp_eq_u32 s{sBLK}, 0'); e('s_cbranch_scc0 L_st4'); stamp(4); lab('L_st4')
    e(f's_add_u32 s{sBLK}, s{sBLK}, 1'); e(f's_cmp_lt_u32 s{sBLK}, 2'); e('s_cbranch_scc1 L_block')
    e(f's_cmp_lg_u64 s[{sFAIL}:{sFAIL+1}], 0'); e('s_cselect_b32 s56, 1, 0')
    e(f's_lshl_b32 s57, s{sWV}, 2'); e('s_add_u32 s57, s57, 0x20000')
    e('v_mov_b32 v1, s57'); e('v_mov_b32 v2, s56'); e('v_mov_b32 v3, 0x20000')
    e('ds_write_b32 v1, v2'); e('s_waitcnt lgkmcnt(0)'); e('s_barrier')
    e('ds_read_b128 v[4:7], v3'); e('s_waitcnt lgkmcnt(0)')
    e('v_or_b32 v4, v4, v5'); e('v_or3_b32 v4, v4, v6, v7'); e('s_nop 0'); e('v_readfirstlane_b32 s56, v4')
    e(f's_andn2_b32 s56, s56, s{sSAFE}'); e('s_cmp_eq_u32 s56, 0'); e('s_cbranch_scc1 L_done')
    e(f's_mov_b32 s{sSAFE}, 1'); e('s_waitcnt vmcnt(0)'); e('s_barrier')
    e('s_branch L_restart')
    lab('L_done')

def descriptor(name, vg=512):
    return f'''.amdhsa_kernel {name}
  .amdhsa_next_free_vgpr {vg}
  .amdhsa_next_free_sgpr 102
  .amdhsa_accum_offset 256
  .amdhsa_group_segment_fixed_size 0
  .amdhsa_kernarg_size 104
  .amdhsa_user_sgpr_count 2
  .amdhsa_user_sgpr_kernarg_segment_ptr 1
  .amdhsa_system_sgpr_workgroup_id_x 1
.end_amdhsa_kernel'''

def oproj():
    sA, sBo, sOut = 8, 12, 16
    ACC2 = lambda mi, ni: (mi * 6 + ni) * 4
    def FR(buf, kk, which, i):
        idx = buf * 96 + kk * 48 + which * 24 + i * 4
        if idx < 192: return vr(32 + idx, 4)
        return ar(144 + idx - 192, 4)
    e('s_cmp_ge_u32 s2, 240'); e('s_cbranch_scc1 L2_end')
    stamp(0)
    e('s_load_dwordx2 s[4:5], s[0:1], 80'); e('s_load_dwordx2 s[6:7], s[0:1], 96')
    e('s_and_b32 s3, s2, 7'); e('s_lshr_b32 s20, s2, 3')
    e('s_lshr_b32 s21, s3, 2')
    e('s_mul_i32 s22, s20, 43'); e('s_lshr_b32 s22, s22, 8')
    e('s_mul_i32 s23, s22, 6'); e('s_sub_u32 s23, s20, s23')
    e('s_and_b32 s3, s3, 3'); e('s_mul_i32 s3, s3, 5'); e('s_add_u32 s22, s22, s3')
    e('v_lshrrev_b32 v1, 6, v0'); e('v_and_b32 v0, 63, v0'); e('v_readfirstlane_b32 s24, v1')
    e('v_lshlrev_b32 v1, 4, v0')
    for i in range(6): e(f'v_add_u32 v{8+i}, {i*131072}, v1')
    e('v_add_u32 v2, 4096, v1')
    e('s_waitcnt lgkmcnt(0)')
    e('s_mul_i32 s3, s21, 20'); e('s_add_u32 s3, s3, s22'); e('s_mul_i32 s3, s3, 786432'); srd(sBo, 6, 7, 's3', 786432)
    e('s_mul_i32 s3, s21, 4718592'); e('s_mul_i32 s25, s23, 6144'); e('s_add_u32 s3, s3, s25'); e(f's_add_u32 s3, s3, {WS_WF}')
    srd(sA, 6, 7, 's3', 0); e(f's_sub_u32 s{sA+2}, 4718592, s25')
    srd(sOut, 4, 5, None, 8*240*1152*2)
    if opt['stamp']: srd(sST, 6, 7, WS_STAMP, 0x100000)
    e('s_lshl_b32 s26, s24, 15')
    e(f's_mul_i32 s27, s24, {32*36864}'); e('s_add_u32 s28, s27, 36864')
    VM.q = []
    pol = POL[opt['opnt']]
    def loads(pr):
        buf = pr % 3
        r = []
        for i in range(6):
            for kk in range(2):
                r.append(f'buffer_load_dwordx4 {FR(buf,kk,0,i)}, v{1 if i < 4 else 2}, s[{sA}:{sA+3}], s{27+kk} offen offset:{(i&3)*1024}')
                r.append(f'buffer_load_dwordx4 {FR(buf,kk,1,i)}, v{8+i}, s[{sBo}:{sBo+3}], s26 offen offset:{kk*1024}{pol}')
        return r
    adv = ['s_add_u32 s26, s26, 2048', f's_add_u32 s27, s27, {2*36864}', f's_add_u32 s28, s28, {2*36864}']
    for pr in range(2):
        for s_ in loads(pr): e(s_); VM.add(pr)
        for s_ in adv: e(s_)
    for pr in range(16):
        ld = loads(pr + 2) if pr + 2 < 16 else []
        wait(vm=pr)
        if pr == 0: stamp(1)
        buf = pr % 3
        g = 0
        for mi in range(6):
            for ni in range(6):
                for kk in range(2):
                    c = '0' if (pr == 0 and kk == 0) else ar(ACC2(mi, ni), 4)
                    e(f'{MF} {ar(ACC2(mi,ni),4)}, {FR(buf,kk,0,ni)}, {FR(buf,kk,1,mi)}, {c}')
                    if ld and g % 3 == 0: e(ld.pop(0)); VM.add(pr + 2)
                    if g == 71 and pr + 2 < 16:
                        for s_ in adv: e(s_)
                    g += 1
    stamp(2)
    e('s_mul_i32 s3, s24, 36864'); e('v_add_u32 v2, s3, v1')
    e('v_and_b32 v3, 15, v0'); e('v_mul_u32_u24 v3, 2304, v3'); e('v_lshrrev_b32 v4, 4, v0'); e('v_lshl_add_u32 v3, v4, 4, v3')
    e(f's_mul_i32 s3, s22, {96*2304}'); e('s_mul_i32 s25, s21, 1152'); e('s_add_u32 s3, s3, s25')
    e('s_mul_i32 s25, s23, 192'); e('s_add_u32 s3, s3, s25'); e('v_add_u32 v3, s3, v3')
    e('s_nop 2')
    for w in range(4):
        if w < 3:
            e(f's_cmp_lg_u32 s24, {w}'); e(f's_cbranch_scc1 L2_w{w+1}')
        for u in range(18):
            if u & 3 == w: continue
            for o in range(2):
                tl = (u // 3) * 6 + (u % 3) * 2 + o
                e(f'ds_write_b128 v2, {ar(tl*4,4)} offset:{tl*1024}')
        own = [u for u in range(18) if u & 3 == w]
        for n, u in enumerate(own):
            for o in range(2):
                tl = (u // 3) * 6 + (u % 3) * 2 + o
                for r in range(4): e(f'v_accvgpr_read_b32 v{32+n*8+o*4+r}, a{tl*4+r}')
        e('s_waitcnt lgkmcnt(0)'); e('s_barrier')
        LG.q = []
        oth = [x for x in range(4) if x != w]
        for x in oth:
            if x * 36864 + 36864 > 65536: e(f'v_add_u32 v{4+x}, {x*36864}, v1')
        for n, u in enumerate(own):
            for xi, x in enumerate(oth):
                for o in range(2):
                    tl = (u // 3) * 6 + (u % 3) * 2 + o
                    a_ = f'v1 offset:{tl*1024}' if x == 0 else f'v{4+x} offset:{tl*1024}'
                    e(f'ds_read_b128 {vr(80+n*24+xi*8+o*4,4)}, {a_}'); LG.add(n)
            if n == 1: pass
        for n, u in enumerate(own):
            wait(lg=n)
            for xi in range(3):
                for j in range(4): e(f'v_pk_add_f32 {vr(32+n*8+2*j,2)}, {vr(32+n*8+2*j,2)}, {vr(80+n*24+xi*8+2*j,2)}')
            for j in range(4): e(f'v_cvt_pk_bf16_f32 v{16+(n&1)*4+j}, v{32+n*8+2*j}, v{32+n*8+2*j+1}')
            e(f's_mov_b32 s3, {(u//3)*16*2304}')
            e(f'buffer_store_dwordx4 {vr(16+(n&1)*4,4)}, v3, s[{sOut}:{sOut+3}], s3 offen offset:{(u%3)*64}')
        if w < 3:
            e('s_branch L2_fin'); lab(f'L2_w{w+1}')
    lab('L2_fin')
    stamp(3); stamp_out(4, 's2', 's24', 0x10000)
    lab('L2_end')
    e('s_endpgm')

L.append(f'''; two launches: projection of q + attention (two heads per workgroup), then the output projection
; @launch kernel={NAME}_kernel grid=(256,1,1) block=(256,1,1) lds=163840
; @launch kernel=oproj_kernel grid=(240,1,1) block=(256,1,1) lds=147456
.amdgcn_target "amdgcn-amd-amdhsa--gfx950"
.text
.globl {NAME}_kernel
.p2align 8
.type {NAME}_kernel,@function
{NAME}_kernel:''')
setup1()
e('s_branch L_go')
lab('L_restart')
e('v_and_b32 v1, 15, v0'); e('v_lshrrev_b32 v2, 4, v0')
i0 = L.index('    ' + f's_mul_i32 s3, s{sWV}, {64*1152}')
i1 = L.index('    s_waitcnt lgkmcnt(0)', i0)
L.extend(L[i0:i1])
lab('L_go')
qproj()
stamp(3)
attention()
stamp(5); stamp_out(6, 's2', f's{sWV}', 0)
e('s_waitcnt vmcnt(0)')
lab('L_end')
e('s_endpgm')
L.append('''.globl oproj_kernel
.p2align 8
.type oproj_kernel,@function
oproj_kernel:''')
oproj()
L.append('.section .rodata,"a"\n.p2align 6\n' + descriptor(NAME + '_kernel') + '\n.p2align 6\n' + descriptor('oproj_kernel'))
open(sys.argv[1], 'w').write('\n'.join(L) + '\n')
```

```python
import sys
NAME = 'concat_heads__mha_block_cached__gqa_block_cached__near_ridge'
opt = dict(xnt=0, wnt=0, trace=0, forcesafe=0, cpf=1, cpfs=5, l2p=1, gpol=1, gpos=100, dsp=7, wog=1, wogp=1, wont=0,
           opol=2, olp=2, only=0, pollpos=70, spin=15, noex=0, perm=0)
for a in sys.argv[2:]:
    k, v = a.split('='); assert k in opt, k; opt[k] = int(v)

POL = ['', ' nt', ' sc1', ' sc0 sc1']
vr = lambda b, n: f'v[{b}:{b+n-1}]'
ar = lambda b, n: f'a[{b}:{b+n-1}]'
def rr(kb, n): return vr(kb[1], n) if kb[0] == 'v' else ar(kb[1], n)
MF = 'v_mfma_f32_16x16x32_bf16'
L = []
INIT = [0]
def e(s):
    if INIT[0] and opt['only'] and (s.startswith('v_') or s.startswith('ds_')) and not s.startswith('v_writelane'): return
    L.append('    ' + s)
def lab(s): L.append(s + ':')

class Cnt:
    def __init__(self): self.q = []
    def add(self, tag): self.q.append(tag)
    def need(self, tags):
        if not isinstance(tags, list): tags = [tags]
        idx = [i for i, t in enumerate(self.q) if t in tags]
        if not idx: return None
        n = len(self.q) - 1 - idx[-1]
        self.q = self.q[idx[-1] + 1:]
        return n
VM, LG = Cnt(), Cnt()
def wait(vm=None, lg=None, lg0=False):
    p = []
    if vm is not None:
        n = VM.need(vm)
        if n is not None: p.append(f'vmcnt({min(n,63)})')
    if lg0:
        LG.q = []; p.append('lgkmcnt(0)')
    elif lg is not None:
        n = LG.need(lg)
        if n is not None: p.append(f'lgkmcnt({min(n,15)})')
    if p: e('s_waitcnt ' + ' '.join(p))

WS_O = 0
WS_R = 64 * 524288
WS_F = WS_R + 64 * 442368
WS_STAMP = 0x4000000
OOB = 0x80000000
LF1, LF2 = 0x27000, 0x27010

sK, sV, sX, sW, sO, sWO, sR, sF, sD, sOut, sCP, sST = 8, 12, 16, 20, 24, 28, 64, 68, 72, 76, 80, 84
sKM = lambda i: 32 + i
sVM = lambda i: 36 + i
sP, sHP, sB, sWV = 40, 41, 42, 43
sKO, sVO, sXO, sWQO = 44, 45, 46, 47
sW8 = 48
sBLK, sLOOP, sSAFE, sKQ, sNQ = 49, 50, 51, 52, 53
sFAIL = 54
sPAD, sFIRST, sFA, sFC, sW9, sEXIT, sF1 = 88, 89, 90, 91, 92, 93, 94
sWH = lambda d: 32 + d
sOH = lambda d: 36 + d
sOT = lambda t: 56 + t
sWOO = 60
sRS = lambda u: 44 + u - 1
sRL = lambda u: 61 + u - 1
KA = lambda ks: 8 + ks
VA = lambda dt: 12 + dt
KD = lambda m: 20 + m
VD = lambda m: 24 + (m & 1)
OA = 26
S = lambda buf, kt, qt: 32 + buf * 32 + (qt * 2 + kt) * 4
P = lambda buf, qt: 96 + buf * 16 + qt * 4
Q = lambda qt, ks: 160 + (qt * 4 + ks) * 4
NM = lambda qt: 224 + qt * 4
def PARK(i):
    if i < 16: return ('v', 240 + i)
    if i < 20: return ('v', 28 + i - 16)
    return ('a', 212 + i - 20)
O = lambda dt, qt: (dt * 4 + qt) * 4
KF = lambda kt, ks: 128 + (kt * 4 + ks) * 4
VF = lambda d4, ks: 160 + (d4 * 2 + ks) * 4
LS = lambda qt: 192 + qt * 4
ONES = 208
RC = lambda qt: 224 + 2 * qt
XF = lambda buf, qt, ks: 32 + buf * 32 + (qt * 2 + ks) * 4
WFR = lambda T, ks: 96 + (T & 3) * 8 + ks * 4
XD = lambda m: 128 + m
WD = lambda m: 136 + m
WA = lambda hi, t: 144 + hi * 8 + t
XA = lambda ks: 6 + ks
ACC = lambda T, qt: (((T + 8) & 15) * 4 + qt) * 4
XSLOT = [32768, 0]
WSLOT = [98304, 65536, 131072]
GX, GW, GD = 28, 26, 29
WOA = [6, 7, 20, 21, 22, 23, 24, 25, 1]
WR = lambda sl: 8 + sl
FAD = 11
RA = lambda j: 12 + j
OUTA, OUTB = 15, 16
W3SLOT = [0, 36864, 98304]
WF3 = lambda T, kk: 144 + (T & 3) * 8 + kk * 4
def ACC3(n, u):
    if u < 3: return ('v', 32 + (u * 9 + n) * 4)
    return ('v', 140 + 4 * n) if n < 5 else ('a', 128 + 4 * (n - 5))
STG = [(0, 0), (0, 1), (1, 0), (2, 0), (3, 0), (1, 1), (2, 1), (3, 1)]
def OF(s, ks, u):
    if s == 0: return PARK((u * 4 + ks) * 4)
    if s == 1: return ('v', 160 + (u * 4 + ks) * 4)
    return ('a', (s & 1) * 64 + ks * 16 + u * 4)

def dma_k(m): return f'buffer_load_dwordx4 v{KD(m)}, s[{sK}:{sK+3}], s{sKO} offen offset:{m*1024} nt lds'
def dma_v(m): return f'buffer_load_dwordx4 v{VD(m)}, s[{sV}:{sV+3}], s{sVO} offen offset:{m*1024} nt lds'

def srd(s, lo, hi, off, size):
    if off is None:
        e(f's_mov_b32 s{s}, s{lo}'); e(f's_mov_b32 s{s+1}, s{hi}')
    else:
        e(f's_add_u32 s{s}, s{lo}, {off}'); e(f's_addc_u32 s{s+1}, s{hi}, 0')
    e(f's_mov_b32 s{s+2}, {size}'); e(f's_mov_b32 s{s+3}, 0x20000')

def trace():
    if opt['trace']:
        e('s_memtime s[96:97]' if opt['trace'] == 1 else 's_memrealtime s[96:97]'); e('s_mov_b32 s98, m0'); e('s_mov_b32 m0, s100'); e('s_waitcnt lgkmcnt(0)')
        e('v_writelane_b32 v27, s96, m0'); e('s_mov_b32 m0, s98')
        e('s_add_u32 s100, s100, 1')

def code_srd(s, entry, end):
    e(f's_getpc_b64 s[{s}:{s+1}]')
    lab('L_pc')
    e(f's_sub_u32 s{s}, s{s}, L_pc-{entry}'); e(f's_subb_u32 s{s+1}, s{s+1}, 0')
    e(f's_mov_b32 s{s+2}, {end}-{entry}'); e(f's_mov_b32 s{s+3}, 0x20000')
def code_pf(off, vt, dst=None, st=3):
    return [f's_lshr_b32 s{st}, s2, 3', f's_lshl_b32 s{st}, s{st}, 2', f's_add_u32 s{st}, s{st}, s{sWV}', f's_lshl_b32 s{st}, s{st}, 8', f's_add_u32 s{st}, s{st}, {off}',
            f'v_lshlrev_b32 v{vt}, 7, v0', 's_mov_b64 exec, 3', f'buffer_load_dword {dst or "v%d" % vt}, v{vt}, s[{sCP}:{sCP+3}], s{st} offen', 's_mov_b64 exec, -1']

def setup1():
    e('s_cmp_ge_u32 s2, 256')
    e('s_cbranch_scc1 L_end')
    if opt['perm']:
        e('s_and_b32 s3, s2, 7'); e('s_lshl_b32 s3, s3, 3'); e('s_lshr_b32 s4, s2, 3'); e('s_and_b32 s4, s4, 7'); e('s_or_b32 s3, s3, s4')
        e('s_and_b32 s2, s2, 0xc0'); e('s_or_b32 s2, s2, s3')
    if opt['trace']: e('s_mov_b32 s100, 0'); trace()
    e('s_and_b32 s3, s2, 7'); e('s_lshr_b32 s4, s2, 3')
    e(f's_lshr_b32 s{sP}, s3, 2')
    e(f's_mul_i32 s5, s{sP}, 40')
    e('s_add_u32 s6, s0, s5'); e('s_addc_u32 s7, s1, 0')
    e('s_load_dwordx8 s[56:63], s[6:7], 0')
    e('s_load_dwordx2 s[94:95], s[6:7], 32')
    e('s_load_dwordx4 s[96:99], s[0:1], 80')
    e('s_load_dwordx2 s[50:51], s[0:1], 96')
    e(f's_and_b32 s{sKQ}, s3, 3'); e(f's_and_b32 s{sNQ}, s4, 3'); e(f's_lshr_b32 s{sB}, s4, 2')
    e(f's_lshl_b32 s3, s{sKQ}, 2'); e(f's_add_u32 s{sHP}, s3, s{sNQ}')
    e('v_lshrrev_b32 v1, 6, v0'); e('v_and_b32 v0, 63, v0'); e(f'v_readfirstlane_b32 s{sWV}, v1')
    e('v_and_b32 v1, 15, v0')
    e('v_lshrrev_b32 v2, 4, v0')
    e(f's_lshl_b32 s{sW8}, s{sWV}, 13')
    if opt['cpf']:
        code_srd(sCP, NAME + '_kernel', 'L_end')
        for s_ in code_pf(0, 31): e(s_)
    staging()
    e('s_waitcnt lgkmcnt(0)')
    e(f's_mul_i32 s3, s{sB}, 276480'); srd(sX, 56, 57, 's3', 276480)
    e(f's_lshl_b32 s3, s{sHP}, 9'); srd(sW, 62, 63, 's3', 0)
    e(f's_sub_u32 s{sW+2}, {576*8192}, s3')

def staging():
    e(f's_mul_i32 s3, s{sWV}, {64*1152}')
    e('v_lshrrev_b32 v3, 3, v0'); e('v_mul_u32_u24 v3, 1152, v3'); e('v_add_u32 v3, s3, v3')
    e('v_and_b32 v4, 7, v0'); e('v_xor_b32 v4, v4, v2')
    e(f'v_lshl_add_u32 v{XD(0)}, v4, 4, v3'); e('v_xor_b32 v4, 4, v4'); e(f'v_lshl_add_u32 v{XD(1)}, v4, 4, v3')
    for t in range(3, -1, -1):
        e(f's_add_u32 s3, s{sKQ}, {t}'); e('s_and_b32 s3, s3, 3'); e('s_mul_i32 s3, s3, 18432')
        for o in (1, 0):
            m = 2 * t + o
            e(f's_add_u32 s4, s3, {o*8192}'); e(f'v_add_u32 v{XD(m)}, s4, v{XD(o)}')
    e(f's_lshl_b32 s3, s{sWV}, 17')
    e('v_lshrrev_b32 v3, 5, v0'); e('v_lshl_add_u32 v5, v3, 13, s3')
    e('v_and_b32 v4, 31, v0')
    for m in range(8):
        e(f'v_or_b32 v6, {((2*m)&3) | ((m>>2)<<2)}, v3'); e('v_lshlrev_b32 v6, 1, v6')
        e('v_xor_b32 v6, v6, v4'); e('v_lshl_add_u32 v6, v6, 4, v5')
        e(f'v_add_u32 v{WD(m)}, {m*16384 - (m&3)*1024}, v6')
    if opt['l2p']:
        e(f's_mul_i32 s3, s{sNQ}, 60'); e(f's_mul_i32 s4, s{sWV}, 15'); e('s_add_u32 s3, s3, s4'); e('s_mul_i32 s3, s3, 1152')
        e(f'v_mul_u32_u24 v4, 1152, v0'); e('v_cmp_gt_u32 vcc, 15, v0'); e('v_add_u32 v4, s3, v4')
        e(f'v_add_u32 v5, {(128 - 15*1152) & 0xffffffff}, v4'); e('v_cndmask_b32 v4, v5, v4, vcc')
        e('v_cmp_gt_u32 vcc, 30, v0'); e('v_bfrev_b32 v6, 1')
        e(f's_lshl_b32 s3, s{sB}, 2'); e(f'v_cndmask_b32 v{GX}, v6, v4, vcc')
        e(f's_add_u32 s3, s3, s{sWV}'); e('s_lshl_b32 s3, s3, 14')
        e('v_and_b32 v5, 3, v0'); e('v_lshl_add_u32 v5, v5, 7, s3'); e('v_bfe_u32 v3, v0, 2, 1'); e('v_lshl_add_u32 v5, v3, 13, v5')
        e('v_cmp_gt_u32 vcc, 16, v0'); e('v_lshrrev_b32 v3, 3, v0'); e('v_lshl_add_u32 v5, v3, 19, v5')
        e(f'v_cndmask_b32 v{GW}, v6, v5, vcc')

def setup1b():
    e(f's_lshl_b32 s3, s{sB}, 5'); e(f's_lshl_b32 s4, s{sHP}, 1'); e('s_add_u32 s3, s3, s4'); e('s_lshl_b32 s3, s3, 18')
    srd(sK, 58, 59, 's3', 524288); srd(sV, 60, 61, 's3', 524288)
    e(f's_mul_i32 s3, s{sKQ}, 1179648'); srd(sWO, 94, 95, 's3', 1179648)
    e(f's_lshl_b32 s5, s{sP}, 3'); e(f's_add_u32 s5, s5, s{sB}'); e('s_lshl_b32 s5, s5, 2')
    e(f's_add_u32 s6, s5, s{sKQ}'); e(f's_add_u32 s7, s5, s{sNQ}')
    e('s_lshl_b32 s3, s6, 19'); srd(sO, 50, 51, 's3', 524288)
    e('s_mul_i32 s3, s7, 442368'); e(f's_add_u32 s3, s3, {WS_R}'); srd(sR, 50, 51, 's3', 442368)
    srd(sF, 50, 51, WS_F, 16384)
    srd(sOut, 96, 97, None, 8*240*1152*2); srd(sD, 98, 99, None, 256)
    if opt['trace']: srd(sST, 50, 51, WS_STAMP, 0x100000)
    e(f's_lshl_b32 s{sFA}, s6, 7'); e(f's_lshl_b32 s{sFC}, s7, 7'); e(f's_add_u32 s{sFC}, s{sFC}, 8192')
    e(f's_sub_u32 s3, 3, s{sKQ}'); e(f's_cmp_eq_u32 s{sWV}, 3'); e(f's_cselect_b32 s{sPAD}, s3, 7')
    e(f's_mul_i32 s{sW9}, s{sWV}, 9216')
    e(f's_mov_b32 s{sSAFE}, {opt["forcesafe"]}'); e(f's_mov_b32 s{sFIRST}, 1')

def setup2():
    e('v_lshrrev_b32 v3, 1, v0'); e('v_and_b32 v3, 7, v3'); e('v_xor_b32 v3, v3, v2')
    e(f'v_lshl_add_u32 v4, v1, 7, s{sW8}')
    e(f'v_lshl_add_u32 v{XA(0)}, v3, 4, v4'); e('v_xor_b32 v3, 4, v3'); e(f'v_lshl_add_u32 v{XA(1)}, v3, 4, v4')
    e('v_bfe_u32 v3, v0, 2, 2')
    e('v_lshl_add_u32 v4, v2, 3, v3'); e('v_lshlrev_b32 v4, 9, v4'); e('v_add_u32 v4, 0x10000, v4')
    e('v_and_b32 v5, 3, v0')
    e('v_lshl_add_u32 v4, v5, 3, v4')
    e('v_and_b32 v5, 1, v2'); e('v_lshl_or_b32 v3, v5, 2, v3')
    for t in range(8):
        e(f'v_xor_b32 v5, {t}, v3'); e(f'v_lshl_add_u32 v{WA(0,t)}, v5, 5, v4')
    for t in range(8): e(f'v_add_u32 v{WA(1,t)}, 0x8000, v{WA(0,t)}')
    e('v_lshrrev_b32 v3, 1, v2'); e('v_and_b32 v4, 1, v2'); e('v_lshl_or_b32 v3, v4, 1, v3')
    for ks in range(4):
        e(f'v_or_b32 v4, {4*ks}, v3'); e('v_xor_b32 v4, v4, v1'); e('v_lshlrev_b32 v4, 4, v4')
        e(f'v_lshl_add_u32 v{KA(ks)}, v1, 8, v4')
    e('v_lshrrev_b32 v4, 2, v0')
    e('v_lshlrev_b32 v5, 8, v4'); e('v_and_b32 v3, 3, v0'); e('v_lshl_add_u32 v5, v3, 3, v5'); e('v_add_u32 v5, 0x10000, v5')
    e('v_and_b32 v4, 7, v4')
    for dt in range(8):
        e(f'v_xor_b32 v3, {dt}, v4'); e(f'v_lshl_add_u32 v{VA(dt)}, v3, 5, v5')
    e(f's_lshl_b32 s3, s{sWV}, 12')
    e('v_lshl_add_u32 v5, v2, 8, s3')
    for m in range(4):
        e(f'v_or_b32 v3, {4*m}, v2'); e('v_xor_b32 v3, v3, v1'); e(f'v_lshl_add_u32 v{KD(m)}, v3, 4, v5')
    for m in range(2):
        e(f'v_or_b32 v3, {4*m}, v2'); e('v_lshlrev_b32 v3, 1, v3'); e('v_xor_b32 v3, v3, v1'); e(f'v_lshl_add_u32 v{VD(m)}, v3, 4, v5')
    for g in range(4):
        e(f's_add_u32 s{sKM(g)}, s3, {g*16384}')
        e(f's_add_u32 s{sVM(g)}, s3, {65536 + ((g+2)&3)*16384}')

def x_dma(s, m):
    r = []
    if m & 1 == 0: r.append(('s', f's_add_u32 m0, s{sW8}, {XSLOT[s&1] + (m>>1)*2048}'))
    r.append(('g', f'buffer_load_dwordx4 v{XD(m)}, s[{sX}:{sX+3}], s{sXO} offen offset:{(m&1)*1024}{POL[opt["xnt"]]} lds', ('X', s)))
    if m == 7: r.append(('a', f's_add_u32 s{sXO}, s{sXO}, 128'))
    return r
def w_dma(s, m):
    r = []
    if m & 3 == 0: r.append(('s', f's_add_u32 m0, s{sW8}, {WSLOT[s%3] + (m>>2)*4096}'))
    r.append(('g', f'buffer_load_dwordx4 v{WD(m)}, s[{sW}:{sW+3}], s{sWQO} offen offset:{(m&3)*1024}{POL[opt["wnt"]]} lds', ('W', s)))
    if m == 7: r.append(('a', f's_add_u32 s{sWQO}, s{sWQO}, 524288'))
    return r
def kv_dma(kind, t, m):
    r = []
    if m == 0: r.append(('s', f's_mov_b32 m0, s{sKM(t) if kind == "K" else sVM(t)}'))
    r.append(('g', dma_k(m) if kind == 'K' else dma_v(m), (kind, t)))
    if m == 3:
        o = sKO if kind == 'K' else sVO
        r.append(('a', f's_add_u32 s{o}, s{o}, 16384'))
    return r
def emit_dma_plain(items):
    for it in items:
        e(it[1])
        if it[0] == 's': e('s_nop 0')
        if it[0] == 'g': VM.add(it[2])
def wread(s, T, ks, h):
    sl = WSLOT[s % 3]
    hi = 0 if sl == 65536 else 1
    base = sl - 65536 - hi * 32768
    off = base + ks * 16384 + h * 2048 + (T >> 3) * 256
    assert off < 65536
    LG.add(('W', s, T))
    return f'ds_read_b64_tr_b16 {vr(WFR(T,ks)+2*h,2)}, v{WA(hi,T&7)} offset:{off}'
def xread(s, qt, ks):
    off = XSLOT[s & 1] + qt * 2048
    LG.add(('X', s))
    return f'ds_read_b128 {vr(XF(s&1,qt,ks),4)}, v{XA(ks)} offset:{off}'
def gather(st):
    VM.add('g'); VM.add('g')
    return [f's_mov_b32 s3, {st*128}', f's_mov_b32 s4, {st*524288}',
            f'buffer_load_dword v{GD}, v{GX}, s[{sX}:{sX+3}], s3 offen{POL[opt["gpol"]]}',
            f'buffer_load_dword v{GD}, v{GW}, s[{sW}:{sW+3}], s4 offen{POL[opt["gpol"]]}']

def qproj_start():
    e(f's_mov_b32 s{sXO}, 0'); e(f's_mov_b32 s{sWQO}, 0')
    if opt['l2p'] & 2:
        for s_ in gather(0): e(s_)
    for m in range(8): emit_dma_plain(x_dma(0, m))
    for m in range(8): emit_dma_plain(w_dma(0, m))

def qproj():
    e(f's_mov_b32 s{sKO}, 0'); e(f's_mov_b32 s{sVO}, 0')
    setup2()
    wait(vm=('X', 0))
    for qt in range(4):
        for ks in range(2): e(xread(0, qt, ks))
    wait(vm=('W', 0)); e('s_barrier')
    trace()
    for T in range(2):
        for ks in range(2):
            for h in range(2): e(wread(0, T, ks, h))
    for s in range(9):
        dpos = {}
        if s < 7:
            dm = [x_dma(s + 2, m) for m in range(8)] + [w_dma(s + 2, m) for m in range(8)]
        elif s == 7:
            dm = [kv_dma('K', 0, m) for m in range(4)] + [kv_dma('K', 1, m) for m in range(4)] + [kv_dma('V', 0, m) for m in range(4)]
        else:
            dm = [kv_dma('K', 2, m) for m in range(4)] + [kv_dma('V', 1, m) for m in range(4)]
        if s == 0:
            dm = [x_dma(1, m) for m in range(8)] + [w_dma(1, m) for m in range(8)] + dm
            for n, it in enumerate(dm): dpos[4 * n + 2] = it
            xpos = {66 + 6 * n: n for n in range(8)}
        else:
            for n, it in enumerate(dm): dpos[(n * opt['dsp'] // 2) * 2 + 4] = it
            xpos = {8 * (6 + n) + 2: n for n in range(8)} if s < 8 else {}
        for g in range(128):
            T, qt, ks = g >> 3, (g >> 1) & 3, g & 1
            if g == 112 and s < 8:
                wait(vm=('W', s + 1), lg0=True); e('s_barrier'); trace()
            elif g & 7 == 0:
                if g == 0: wait(lg=('X', s))
                wait(lg=('W', s, T))
            if g in xpos and xpos[g] == 0: wait(vm=('X', s + 1))
            c = '0' if (s == 0 and ks == 0) else ar(ACC(T, qt), 4)
            e(f'{MF} {ar(ACC(T,qt),4)}, {vr(WFR(T,ks),4)}, {vr(XF(s&1,qt,ks),4)}, {c}')
            if (g & 7) < 2:
                T2, s2 = (T + 2) & 15, s + ((T + 2) >> 4)
                if s2 < 9:
                    for h in range(2): e(wread(s2, T2, g & 1, h))
            if g in xpos: e(xread(s + 1, xpos[g] >> 1, xpos[g] & 1))
            if opt['cpf'] and s == opt['cpfs'] and g == 117:
                for s_ in code_pf(f'L_att-{NAME}_kernel', 31): e(s_)
                VM.add('cpf')
            if opt['l2p'] and ((s == 0 and g == 3) or (g == opt['gpos'] + 1 and s in (1, 3, 5))):
                for s_ in gather(2 if s == 0 else s + 3): e(s_)
            if g == 119 and s == 1:
                e(f's_lshl_b32 s3, s{sNQ}, 2'); e(f's_add_u32 s3, s3, s{sFA}'); e(f's_lshl_b32 s4, s{sKQ}, 2'); e(f's_add_u32 s4, s4, s{sFC}')
                e(f's_cmp_eq_u32 s{sWV}, 0'); e(f's_cselect_b32 s5, s{sFIRST}, 0'); e('s_cmp_eq_u32 s5, 1')
                e(f's_cselect_b32 s3, s3, {OOB}'); e(f's_cselect_b32 s4, s4, {OOB}')
                e('v_bfrev_b32 v30, 1'); e('v_writelane_b32 v30, s3, 0'); e('v_writelane_b32 v30, s4, 1'); e('v_mov_b32 v3, 0')
                e(f'buffer_store_dword v3, v30, s[{sF}:{sF+3}], 0 offen sc1'); VM.add('clr')
            if g == 119 and s == 3:
                wait(vm='clr')
                e(f's_cmp_eq_u32 s{sWV}, 0'); e(f's_cselect_b32 s3, 0, {OOB}')
                e('v_bfrev_b32 v30, 1'); e('v_writelane_b32 v30, s3, 0'); e(f'v_mov_b32 v3, s{sFIRST}')
                e(f'buffer_atomic_add v3, v30, s[{sD}:{sD+3}], 0 offen sc1'); VM.add('cnt')
            if g + 1 in dpos:
                for it in dpos[g + 1]:
                    if it[0] == 's': e(it[1])
            if g in dpos:
                for it in dpos[g]:
                    if it[0] == 'g': e(it[1]); VM.add(it[2])
            if g - 1 in dpos:
                for it in dpos[g - 1]:
                    if it[0] == 'a': e(it[1])
    trace()
    e(f'buffer_load_dword v6, v30, s[{sD}:{sD+3}], 0 offen sc1')
    e('s_mov_b32 s58, 0x3e0293ee'); e('s_mov_b32 s59, 0x3e0293ee')
    def conv(T0, dst):
        n = 0
        for t in range(4):
            for qt in range(4):
                tb = 32 + (n & 1) * 8; n += 1
                for o in range(2):
                    for r in range(4): e(f'v_accvgpr_read_b32 v{tb+4*o+r}, a{ACC(T0+2*t+o,qt)+r}')
                for j in range(4): e(f'v_pk_mul_f32 {vr(tb+2*j,2)}, {vr(tb+2*j,2)}, s[58:59]')
                ds = [dst((qt*4+t)*4 + j) for j in range(4)]
                tmp = [d[1] if d[0] == 'v' else 48 + j for j, d in enumerate(ds)]
                for j in [0, 2, 1, 3]: e(f'v_cvt_pk_bf16_f32 v{tmp[j]}, v{tb+2*j}, v{tb+2*j+1}')
                e('s_nop 0')
                e(f'v_permlane16_swap_b32 v{tmp[0]}, v{tmp[2]}'); e(f'v_permlane16_swap_b32 v{tmp[1]}, v{tmp[3]}')
                for j, d in enumerate(ds):
                    if d[0] == 'a': e(f'v_accvgpr_write_b32 a{d[1]}, v{tmp[j]}')
    conv(0, lambda i: ('v', 160 + i))
    conv(8, PARK)
    e(f's_lshl_b32 s3, s{sWV}, 14'); e(f'v_lshl_add_u32 v{OA}, v0, 4, s3')
    e('v_mov_b32 v4, 0x3f803f80')
    for r in range(4): e(f'v_accvgpr_write_b32 a{ONES+r}, v4')

def qk(buf, kt, qt, ks, c0=False):
    c = ('0' if c0 else vr(NM(qt), 4)) if ks == 0 else vr(S(buf, kt, qt), 4)
    return f'{MF} {vr(S(buf,kt,qt),4)}, {ar(KF(kt,ks),4)}, {vr(Q(qt,ks),4)}, {c}'
def pv(pb, dt, qt, ks, first):
    c = '0' if (first and ks == 0) else ar(O(dt, qt), 4)
    return f'{MF} {ar(O(dt,qt),4)}, {ar(VF(dt&3,ks),4)}, {vr(P(pb+ks,qt),4)}, {c}'
def sm(pb, qt, ks, first):
    c = '0' if (first and ks == 0) else ar(LS(qt), 4)
    return f'{MF} {ar(LS(qt),4)}, {ar(ONES,4)}, {vr(P(pb+ks,qt),4)}, {c}'
def kread(unit, kt, ks): return f'ds_read_b128 {ar(KF(kt,ks),4)}, v{KA(ks)} offset:{(unit % 8) * 8192 + kt * 4096}'
def vread(tile, dt, ks, h): return f'ds_read_b64_tr_b16 {ar(VF(dt&3,ks)+2*h,2)}, v{VA(dt)} offset:{((tile + 2) % 4) * 16384 + (32*ks + 16*h) * 256}'
def xop(b, n):
    qt, kt, r = n >> 3, (n >> 2) & 1, n & 3
    return f'v_exp_f32 v{S(b,kt,qt)+r}, v{S(b,kt,qt)+r}'
def cop(u, n):
    qt, kt, r = n >> 2, (n >> 1) & 1, (n & 1) * 2
    return f'v_cvt_pk_bf16_f32 v{P(u&3,qt)+(n&3)}, v{S(u&1,kt,qt)+r}, v{S(u&1,kt,qt)+r+1}'

PLAN_A = ['dC', 'x', 'd', 'x', 'c', 'x', 'dd', 'g', 'x', 'c', 'x', 'dd', 'g', 'x', 'c', 'x', 'dd', 'g', 'x', 'c', 'x', '', 'g',
          'x', 'c', 'x', 'x', 'c', 'x', 'x', 'c', 'x', 'x', 'c', 'x', 'x']
PLAN_B = ['tc', 'x', 'tt', 'x', 'tc', 'x', 'tt', 'x', 'tc', 'x', 'tt', 'x', 'tc', 'x', 'tt', 'x', 'tc', 'x', 'tt', 'x', 'tc', 'x', 'x', 'c',
          'x', 'x', '', '', '', '', '', '']

def step(u, dopv=True, doqk=True, dosm=True, dovr=True, dma=None, first=False, spill=True, fills=None, sumfirst=False, half=None):
    b = u & 1; hh = u & 1; j = u >> 1
    pb = (2 * (j - 1)) & 3
    mf = []
    for d4 in range(4):
        for qt in range(4):
            for ks in range(2): mf.append(pv(pb, 4*hh + d4, qt, ks, first) if dopv else None)
    for qt in (2*hh, 2*hh+1):
        for ks in range(2): mf.append(sm(pb, qt, ks, first) if dopv else None)
    if sumfirst: mf = mf[32:] + mf[:32]
    for kt in range(2):
        for qt in range(4):
            for ks in range(4): mf.append(qk(b ^ 1, kt, qt, ks) if doqk else None)
    plan = PLAN_A + PLAN_B
    cntx = ''.join(plan)
    assert len(PLAN_A) == 36 and len(PLAN_B) == 32
    assert [cntx.count(z) for z in 'xcdtg'] == [32, 15, 8, 16, 4]
    nx = nc = nd = nt_ = ng = 0
    vtile = (u + 1) // 2 - 1; vh = (u + 1) & 1
    korder = [(kt, ks) for kt in range(2) for ks in range(4)]
    vorder = [(d4, ks, h) for d4 in range(4) for ks in range(2) for h in range(2)]
    fills = list(fills or [])
    lastx = False
    for g in range(68):
        if g == 36 and doqk: e('s_waitcnt lgkmcnt(0)')
        if mf[g]: e(mf[g]); lastx = False
        nxt = plan[g + 1] if g + 1 < 68 else ''
        if 'g' in nxt and ng == 0 and dma: e(f's_mov_b32 m0, s{dma[1]}'); lastx = False
        used = 0
        for z in plan[g]:
            if z == 'x':
                if dosm: e(xop(b, nx)); lastx = True; used += 1
                nx += 1
            elif z == 'c':
                assert nx >= 2 * nc + 2, (g, nx, nc)
                if dosm:
                    if lastx: e('s_nop 0')
                    e(cop(u, nc)); lastx = False; used += 1
                nc += 1
            elif z == 'C':
                if spill: e(cop(u - 1, 15)); lastx = False; used += 1
            elif z == 'd':
                if doqk: e(kread(u + 1, *korder[nd])); lastx = False; used += 1
                nd += 1
            elif z == 't':
                if dovr: e(vread(vtile, 4 * vh + vorder[nt_][0], vorder[nt_][1], vorder[nt_][2])); lastx = False; used += 1
                nt_ += 1
            elif z == 'g':
                if dma:
                    if not mf[g] and ng == 0: e('s_nop 0')
                    e(dma_k(ng) if dma[0] == 'k' else dma_v(ng)); lastx = False; used += 1
                ng += 1
        if mf[g] and fills and not used and g >= 1:
            for s_ in fills.pop(0): e(s_)
            lastx = False
        if mf[g] and half and used == 1 and plan[g] in ('c', 'd'):
            e(half.pop(0)); lastx = False
        if g == 62 and dma:
            r = sKO if dma[0] == 'k' else sVO
            e(f's_add_u32 s{r}, s{r}, 16384')
    return fills

def first_step(dma):
    for kt in range(2):
        for ks in range(4): e(kread(0, kt, ks))
    e(f's_mov_b32 m0, s{dma[1]}'); e('s_nop 0')
    for m in range(4): e(dma_k(m))
    e(f's_add_u32 s{sKO}, s{sKO}, 16384')
    e('s_mov_b32 s3, 0x7149f2ca')
    for qt in range(4):
        e(f's_cmp_eq_u32 s{sPAD}, {qt}'); e(f's_cselect_b32 s{56+qt}, s3, 0xff800000')
    e('s_waitcnt lgkmcnt(0)')
    def mx(qt):
        a, b2 = S(0, 0, qt), S(0, 1, qt)
        t = 1 + qt
        return [f'v_max3_f32 v{t}, v{a}, v{a+1}, v{a+2}', f'v_max3_f32 v{t}, v{t}, v{a+3}, v{b2}',
                f'v_max3_f32 v{t}, v{t}, v{b2+1}, v{b2+2}', f'v_max3_f32 v{t}, v{t}, v{b2+3}, v{NM(qt)}']
    for qt in range(4):
        pend = mx(qt - 2) if qt >= 2 else []
        for kt in range(2):
            for ks in range(4):
                e(qk(0, kt, qt, ks, c0=True))
                if pend and ks & 1: e(pend.pop(0))
    for s_ in mx(2): e(s_)
    e('s_nop 3')
    for s_ in mx(3): e(s_)
    for sw in ('v_permlane16_swap_b32', 'v_permlane32_swap_b32'):
        for qt in range(4): e(f'v_mov_b32 v{NM(qt)}, v{1+qt}')
        e('s_nop 0')
        for qt in range(4): e(f'{sw} v{1+qt}, v{NM(qt)}')
        e('s_nop 0')
        if sw == 'v_permlane16_swap_b32':
            for qt in range(4): e(f'v_max_f32 v{1+qt}, v{1+qt}, v{NM(qt)}')
        else:
            for qt in range(4): e(f'v_max3_f32 v{1+qt}, v{1+qt}, v{NM(qt)}, s{56+qt}')
    for qt in range(4):
        for r in range(4): e(f'v_mul_f32 v{NM(qt)+r}, -1.0, v{1+qt}')
    for qt in range(4):
        for kt in range(2):
            for r in range(4): e(f'v_add_f32 v{S(0,kt,qt)+r}, v{S(0,kt,qt)+r}, v{NM(qt)}')

def pairs(l): return [l[i:i+2] for i in range(0, len(l), 2)]

def iteration(i):
    INIT[0] = 1
    e('s_waitcnt vmcnt(16) lgkmcnt(0)')
    e('s_barrier')
    trace()
    dk, dv = ('k', sKM((i + 3) % 4)), ('v', sVM((i + 2) % 4))
    if i == 0:
        first_step(dk)
        step(0, dopv=False, dovr=False, dma=dv, spill=False)
    elif i == 1:
        step(1, dopv=False, dma=dk)
        e('s_waitcnt lgkmcnt(0)')
        step(2, dma=dv, first=True)
    elif i == 2:
        step(3, dma=dk, first=True)
        e('s_waitcnt lgkmcnt(0)')
        step(4, dma=dv)
    elif i == 16:
        mv = []
        for n in range(64):
            k, r = PARK(n)
            mv.append(f'v_mov_b32 v{160+n}, v{r}' if k == 'v' else f'v_accvgpr_read_b32 v{160+n}, a{r}')
        step(31, doqk=False)
        e('s_waitcnt lgkmcnt(0)')
        r = step(32, doqk=False, dosm=False, fills=pairs(mv))
        assert not r
        e('s_waitcnt lgkmcnt(0)')
        r = step(33, doqk=False, dosm=False, dovr=False, spill=False, sumfirst=True, fills=[[]] * 6 + sumcheck(LF1))
        assert not r
    else:
        step(2*i - 1, dma=dk)
        e('s_waitcnt lgkmcnt(0)')
        step(2*i, dma=dv)
    INIT[0] = 0

def sumcheck(lf):
    sor = [] if opt['only'] else [f's_or_b64 s[{sFAIL}:{sFAIL+1}], s[{sFAIL}:{sFAIL+1}], vcc']
    r = [['s_mov_b32 s60, 0x4e800000', f's_mov_b64 s[{sFAIL}:{sFAIL+1}], 0']]
    for qt in range(4):
        r.append([f'v_accvgpr_read_b32 v{RC(qt)}, a{LS(qt)}', f'v_cmp_ngt_f32 vcc, s60, v{RC(qt)}'])
        r.append(sor + [f'v_max_f32 v{RC(qt)}, 0x00800000, v{RC(qt)}'])
    for qt in range(4): r.append([f'v_rcp_f32 v{RC(qt)}, v{RC(qt)}'])
    r.append([f's_cmp_lg_u64 s[{sFAIL}:{sFAIL+1}], 0', 's_cselect_b32 s60, 1, 0'])
    r.append([f's_lshl_b32 s61, s{sWV}, 2', f's_add_u32 s61, s61, {lf & ~0xffff}'])
    r.append([f'v_mov_b32 v{RC(0)+1}, s60', f'v_mov_b32 v{RC(1)+1}, s61'])
    r.append([f'ds_write_b32 v{RC(1)+1}, v{RC(0)+1} offset:{lf & 0xffff}'])
    return r

def oconv(qt, t, tb, dst):
    r = [f'v_accvgpr_read_b32 v{tb+j}, a{O(2*t+(j>>2),qt)+(j&3)}' for j in range(8)]
    r += [f'v_pk_mul_f32 {vr(tb+2*j,2)}, {vr(tb+2*j,2)}, {vr(RC(qt),2)} op_sel_hi:[1,0]' for j in range(4)]
    for j in range(4):
        d = dst(j)
        r.append(f'v_cvt_pk_bf16_f32 v{d[1] if d[0] == "v" else tb+j}, v{tb+2*j}, v{tb+2*j+1}')
    for j in range(4):
        d = dst(j)
        if d[0] == 'a': r.append(f'v_accvgpr_write_b32 a{d[1]}, v{tb+j}')
    return r

def maxpass():
    e('v_and_b32 v1, 15, v0'); e('v_lshlrev_b32 v1, 4, v1'); e(f'v_xor_b32 v5, v{KA(0)}, v1')
    e(f's_lshl_b32 s56, s{sBLK}, 18'); e('s_mov_b32 s58, 0')
    lab('L_mp')
    e('s_add_u32 s57, s56, 4096')
    for kt in range(2):
        for ks in range(4):
            e(f'buffer_load_dwordx4 {ar(KF(kt,ks),4)}, v5, s[{sK}:{sK+3}], s{56+kt} offen offset:{ks*64}')
    e('s_waitcnt vmcnt(0)')
    for qt in range(4):
        for kt in range(2):
            for ks in range(4): e(qk(0, kt, qt, ks, c0=True))
    e('s_nop 7')
    for qt in range(4):
        a, b2 = S(0, 0, qt), S(0, 1, qt)
        t = NM(qt)
        e(f'v_max3_f32 v{t}, v{t}, v{a}, v{a+1}'); e(f'v_max3_f32 v{t}, v{t}, v{a+2}, v{a+3}')
        e(f'v_max3_f32 v{t}, v{t}, v{b2}, v{b2+1}'); e(f'v_max3_f32 v{t}, v{t}, v{b2+2}, v{b2+3}')
    e('s_add_u32 s56, s56, 8192'); e('s_add_u32 s58, s58, 1'); e('s_cmp_lt_u32 s58, 32'); e('s_cbranch_scc1 L_mp')

OUTL = []
def flagcheck(name, sline, val):
    red = ['v_min3_u32 v2, v2, v3, v4', 'v_min_u32 v2, v2, v5', 's_nop 0', 'v_readfirstlane_b32 s3, v2', f's_cmp_ge_u32 s3, {val}']
    for s_ in red: e(s_)
    e(f's_cbranch_scc0 L_spin{name}'); lab(f'L_back{name}')
    OUTL.extend([f'L_spin{name}:', 's_mov_b32 s4, 0', f'L_sp{name}:',
                 f'buffer_load_dwordx4 v[2:5], off, s[{sF}:{sF+3}], s{sline} sc1', 's_waitcnt vmcnt(0)'] + red +
                [f's_cbranch_scc1 L_back{name}', 's_add_u32 s4, s4, 1', f's_cmp_lt_u32 s4, {1 << opt["spin"]}', f's_cbranch_scc1 L_sp{name}', f's_branch L_back{name}'])

def wo_dma(s, i):
    r = []
    if i == 0:
        d, blk = STG[s]
        r.append(f's_add_u32 s{sWOO}, s{sWH(d)}, {blk*147456}')
    if i & 3 == 0: r.append(f's_add_u32 m0, s{sW9}, {W3SLOT[s % 3] + (i >> 2) * 4096}')
    return r, f'buffer_load_dwordx4 v{WOA[i]}, s[{sWO}:{sWO+3}], s{sWOO} offen offset:{(i&3)*1024}{POL[opt["wont"]]} lds'
def dma_groups(s):
    gs = [[]]
    for i in range(9):
        pre, ld = wo_dma(s, i)
        gs[-1].extend(pre); gs.append([ld])
    return gs

def attention():
    lab('L_att')
    e(f's_mov_b32 s{sBLK}, 0'); e(f's_mov_b32 s{sEXIT}, 99')
    lab('L_block')
    for qt in range(4): e(f'v_mov_b32 v{NM(qt)}, 0xff800000')
    e(f's_cmp_eq_u32 s{sSAFE}, 0'); e('s_cbranch_scc1 L_nomp')
    maxpass()
    lab('L_nomp')
    iteration(0); iteration(1); iteration(2)
    e(f's_mov_b32 s{sLOOP}, 0')
    e('s_branch L_it3')
    L.append('.p2align 6')
    lab('L_loop')
    iteration(4); iteration(5); iteration(6)
    e(f's_cmp_eq_u32 s{sLOOP}, s{sEXIT}'); e('s_cbranch_scc1 L_tail')
    lab('L_it3')
    iteration(7)
    e(f's_add_u32 s{sLOOP}, s{sLOOP}, 1'); e(f's_cmp_lt_u32 s{sLOOP}, 4'); e('s_cbranch_scc1 L_loop')
    iteration(16)
    n = 0
    for t in range(4):
        for qt in range(4):
            for s_ in oconv(qt, t, 32 + (n & 1) * 8, lambda j: PARK((qt*4+t)*4 + j)): e(s_)
            n += 1
    e('v_readfirstlane_b32 s3, v6'); e(f's_cmp_lg_u32 s{sWV}, 0'); e('s_cselect_b32 s3, 256, s3')
    e('s_cmp_ge_u32 s3, 256'); e('s_cbranch_scc0 L_spinD'); lab('L_backD')
    OUTL.extend(['L_spinD:', 's_mov_b32 s4, 0', 'L_spD:', f'buffer_load_dword v6, off, s[{sD}:{sD+3}], 0 sc1', 's_waitcnt vmcnt(0)',
                 'v_readfirstlane_b32 s3, v6', 's_cmp_ge_u32 s3, 256', 's_cbranch_scc1 L_backD',
                 's_add_u32 s4, s4, 1', f's_cmp_lt_u32 s4, {1 << opt["spin"]}', 's_cbranch_scc1 L_spD', 's_branch L_backD'])
    e(f's_mov_b32 s{sBLK}, 1'); e(f's_mov_b32 s{sEXIT}, 3')
    e('s_branch L_block')

def tail():
    L.append('.p2align 6')
    lab('L_tail')
    INIT[0] = 1
    VM.q = []
    e('s_waitcnt vmcnt(16) lgkmcnt(0)'); e('s_barrier'); trace()
    e(f's_lshl_b32 s{sOT(0)}, s{sNQ}, 17')
    for t in range(1, 4): e(f's_add_u32 s{sOT(t)}, s{sOT(0)}, {4096*t}')
    st = []
    for t in range(4):
        for u in range(4):
            st.append([f'buffer_store_dwordx4 {rr(PARK((u*4+t)*4),4)}, v{OA}, s[{sO}:{sO+3}], s{sOT(t)} offen offset:{u*1024}{POL[opt["opol"]]}'])
    gpre = [f's_lshl_b32 s3, s{sB}, 2', f's_add_u32 s3, s3, s{sNQ}', 's_mul_i32 s3, s3, 36864', f's_add_u32 s3, s3, s{sW9}',
            'v_cmp_gt_u32 vcc, 36, v0', 'v_lshl_add_u32 v5, v0, 7, s3', 'v_bfrev_b32 v3, 1', 's_mov_b32 s5, 4608', 'v_cndmask_b32 v5, v3, v5, vcc']
    gp = [[f'buffer_load_dword a128, v5, s[{sWO}:{sWO+3}], 0 offen{POL[opt["wogp"]]}'],
          [f'buffer_load_dword a128, v5, s[{sWO}:{sWO+3}], s5 offen{POL[opt["wogp"]]}']] if opt['wog'] else []
    if opt['cpf']:
        cp = code_pf(f'L_tail-{NAME}_kernel+4096', 1, 'a129', 6)
        gp = [cp[0:2], cp[2:4]] + gp + [cp[4:6], cp[6:]]
    ad = ['v_mul_u32_u24 v2, 3641, v0', 'v_lshrrev_b32 v2, 16, v2', 'v_mul_u32_u24 v3, 18, v2', 'v_sub_u32 v3, v0, v3',
          f's_mul_i32 s3, s{sNQ}, 288', f's_lshl_b32 s4, s{sW9}, 2', 's_add_u32 s3, s3, s4',
          'v_mul_u32_u24 v2, 1152, v2', 'v_lshl_add_u32 v2, v3, 4, v2', 'v_add_u32 v2, s3, v2', 'v_add_u32 v4, 864, v2']
    ad2 = []
    for i in range(9):
        R, c = divmod(64 * i, 18)
        ad2 += [[f'v_cmp_gt_u32 s[{4+2*(i&1)}:{5+2*(i&1)}], {18 - c}, v3'],
                [f'v_cndmask_b32 v{WOA[i]}, v4, v2, s[{4+2*(i&1)}:{5+2*(i&1)}]', f'v_add_u32 v{WOA[i]}, {R*1152 + c*16 - (i&3)*1024}, v{WOA[i]}']]
    seq = ad2[0] + ad2[2] + ['s_nop 0']
    for i in range(9): seq += ad2[2*i+1] + (ad2[2*i+4] if i + 2 < 9 else [])
    sd = lambda d: [f's_add_u32 s3, s{sNQ}, {d}', 's_and_b32 s3, s3, 3', f's_mul_i32 s{sWH(d)}, s3, 294912', f's_lshl_b32 s{sOH(d)}, s3, 17']
    ad = ad + seq + [f's_mul_i32 s{sWH(0)}, s{sNQ}, 294912', f's_lshl_b32 s{sOH(0)}, s{sNQ}, 17']
    rest = step(29, fills=st, half=gpre)
    assert not gpre
    e('s_waitcnt lgkmcnt(0)')
    rest = step(30, fills=rest[:3] + gp[:2] + rest[3:] + gp[2:], half=ad)
    assert not rest
    for s_ in ad: e(s_)
    e(f'v_mov_b32 v2, {LF1 & ~0xffff}'); e(f'ds_read_b128 v[2:5], v2 offset:{LF1 & 0xffff}')
    nst = 16 + (2 if opt['wog'] else 0) + (1 if opt['cpf'] else 0)
    for _ in range(nst): VM.add('O1')
    e(f's_waitcnt vmcnt({nst + 8}) lgkmcnt(0)'); e('s_barrier'); trace()
    f1 = [['v_or3_b32 v2, v2, v3, v4', 'v_or_b32 v2, v2, v5'], [f'v_readfirstlane_b32 s{sF1}, v2']]
    rest = step(31, doqk=False, fills=dma_groups(0))
    for _ in range(9): VM.add(('W3', 0))
    e('s_waitcnt lgkmcnt(0)')
    oth = f1 + pairs(sd(1) + sd(2) + sd(3))
    fl = list(rest)
    for g_ in dma_groups(1): fl += [oth.pop(0) if oth else [], [], g_]
    rest = step(32, doqk=False, dosm=False, fills=fl)
    assert not rest
    for _ in range(9): VM.add(('W3', 1))
    e('s_waitcnt lgkmcnt(0)')
    ad = ['v_lshrrev_b32 v2, 2, v0', 'v_mul_u32_u24 v2, 288, v2', 'v_and_b32 v3, 3, v0', f'v_lshl_add_u32 v{WR(0)}, v3, 3, v2',
          f'v_add_u32 v{WR(1)}, {W3SLOT[1]}, v{WR(0)}', f'v_add_u32 v{WR(2)}, {W3SLOT[2]}, v{WR(0)}',
          f's_lshl_b32 s3, s{sNQ}, 2', f's_add_u32 s3, s3, s{sFA}', f's_cmp_eq_u32 s{sWV}, 0', f's_cselect_b32 s3, s3, {OOB}',
          f'v_bfrev_b32 v{FAD}, 1', f'v_writelane_b32 v{FAD}, s3, 0', 'v_mov_b32 v2, 1']
    rest = step(33, doqk=False, dosm=False, dovr=False, spill=False, sumfirst=True, fills=pairs(ad) + sumcheck(LF2))
    assert not rest
    INIT[0] = 0
    e(f's_andn2_b32 s{sF1}, s{sF1}, s{sSAFE}'); e(f's_cmp_lg_u32 s{sF1}, 0'); e('s_cbranch_scc1 L_redo')
    wait(vm=('W3', 0), lg0=True); e('s_barrier'); trace()
    e(f'buffer_store_dword v2, v{FAD}, s[{sF}:{sF+3}], 0 offen sc1'); VM.add('fa')

def w3read(s, T, kk, h):
    kp, n = divmod(T, 9)
    off = (2 * kp + kk) * 9216 + h * 4608 + n * 32
    LG.add(('W3', s, T))
    return f'ds_read_b64_tr_b16 {ar(WF3(s*18+T,kk)+2*h,2)}, v{WR(s%3)} offset:{off}'

def oproj():
    LG.q = []
    e(f'v_mov_b32 v3, {LF2 & ~0xffff}'); e(f'ds_read_b128 v[236:239], v3 offset:{LF2 & 0xffff}'); LG.add('f2')
    for T in range(2):
        for kk in range(2):
            for h in range(2): e(w3read(0, T, kk, h))
    cv = []
    n = 0
    for t in range(4):
        for u in range(4):
            cv += oconv(u, t, 12 if n & 1 else 228 + 4, lambda j: ('v', 160 + (u*4+t)*4 + j)); n += 1
    f2 = ['v_or3_b32 v236, v236, v237, v238', 'v_or_b32 v236, v236, v239', 's_nop 0', f'v_readfirstlane_b32 s{sF1}, v236']
    cv = f2 + cv
    late = []
    for s in range(8):
        vm = []
        if 1 <= s < 7:
            d, blk = STG[s + 1]
            for ks in range(4):
                for u in range(4):
                    pre = [f's_add_u32 s{sOT(ks)}, s{sOH(d)}, {blk*65536 + ks*4096}'] if u == 0 else []
                    vm.append((pre, f'buffer_load_dwordx4 {rr(OF(s+1,ks,u),4)}, v{OA}, s[{sO}:{sO+3}], s{sOT(ks)} offen offset:{u*1024}{POL[opt["olp"]]}', ('O', s + 1, ks >> 1)))
        wl = [wo_dma(s + 2, i) + (('W3', s + 2),) for i in range(9)] if s < 6 else []
        if s == 1:
            sl = []
            for t in range(4):
                for u in range(4):
                    pre = [f's_add_u32 s{sOT(t)}, s{sOH(0)}, {65536 + t*4096}'] if u == 0 else []
                    sl.append((pre, f'buffer_store_dwordx4 {rr(OF(1,t,u),4)}, v{OA}, s[{sO}:{sO+3}], s{sOT(t)} offen offset:{u*1024}{POL[opt["opol"]]}', 'O2'))
            pos = {2 + 4 * n: it for n, it in enumerate(vm)}
            pos.update({66 + 3 * n: it for n, it in enumerate(wl + sl)})
        elif s == 0:
            pos = {4 + 6 * n: it for n, it in enumerate(wl)}
        else:
            al = vm + wl
            pos = {2 + (n * 138) // max(len(al), 1): it for n, it in enumerate(al)}
        pos2 = {}
        for g, it in sorted(pos.items()):
            while (g & 7) < 2 or g in pos2: g += 1
            pos2[g] = it
        pos = pos2
        assert not pos or max(pos) < 144, (s, max(pos))
        if s == 5:
            late = [f'v_lshl_add_u32 v{RA(0)}, v0, 4, s{sW9}', f'v_add_u32 v{RA(1)}, 4096, v{RA(0)}', f'v_add_u32 v{RA(2)}, 8192, v{RA(0)}']
            for u in range(1, 4):
                late += [f's_add_u32 s3, s{sKQ}, {u}', 's_and_b32 s3, s3, 3', 's_mul_i32 s3, s3, 110592', f's_add_u32 s{sRS(u)}, s3, {(u-1)*36864}']
            late += [f's_mul_i32 s{sRL(1)}, s{sKQ}, 110592', f's_add_u32 s{sRL(2)}, s{sRL(1)}, 36864', f's_add_u32 s{sRL(3)}, s{sRL(1)}, 73728']
            late += [f's_mul_i32 s3, s{sB}, 240', f's_lshl_b32 s4, s{sWV}, 6', 's_add_u32 s3, s3, s4', f's_lshl_b32 s4, s{sKQ}, 4', 's_add_u32 s3, s3, s4',
                     's_mul_i32 s3, s3, 2304', f's_mul_i32 s4, s{sP}, 1152', 's_add_u32 s3, s3, s4', f's_mul_i32 s4, s{sNQ}, 288', 's_add_u32 s3, s3, s4',
                     f's_cmp_eq_u32 s{sPAD}, 0', f's_cselect_b32 s3, {OOB}, s3',
                     'v_and_b32 v17, 15, v0', 'v_mul_u32_u24 v17, 2304, v17', 'v_add_u32 v17, s3, v17', 'v_lshrrev_b32 v18, 4, v0',
                     f'v_lshl_add_u32 v{OUTB}, v18, 3, v17', 'v_and_b32 v19, 1, v18', 'v_lshl_add_u32 v17, v19, 5, v17', 'v_lshrrev_b32 v18, 1, v18',
                     f'v_lshl_add_u32 v{OUTA}, v18, 4, v17',
                     f's_lshl_b32 s3, s{sKQ}, 2', f's_add_u32 s3, s3, s{sFC}', f's_cmp_eq_u32 s{sWV}, 0', f's_cselect_b32 s3, s3, {OOB}',
                     f'v_writelane_b32 v{FAD}, s3, 0']
        snd = []
        for g in range(144):
            T, u, kk = g >> 3, (g >> 1) & 3, g & 1
            kp, n = divmod(T, 9)
            if g == 128 and s < 7:
                tags = [('W3', s + 1)] + (['O2'] if s == 2 else []) + (['poll'] if s in (0, 3) else [])
                wait(vm=tags, lg0=True)
                if s == 0:
                    e(f's_andn2_b32 s{sF1}, s{sF1}, s{sSAFE}'); e(f's_cmp_lg_u32 s{sF1}, 0'); e('s_cbranch_scc1 L_redo')
                e('s_barrier'); trace()
                if s == 2:
                    e('v_mov_b32 v2, 2'); e(f'buffer_store_dword v2, v{FAD}, s[{sF}:{sF+3}], 0 offen sc1'); VM.add('fb')
                if s in (0, 3): flagcheck('AB'[s // 3], sFA, 1 + s // 3)
            elif g & 7 == 0:
                if s >= 2 and g in (0, 72): wait(vm=('O', s, g // 72), lg=('W3', s, T))
                else: wait(lg=('W3', s, T))
            acc = rr(ACC3(n, u), 4)
            c = '0' if (s == 0 and kp == 0 and kk == 0) else acc
            e(f'{MF} {acc}, {ar(WF3(s*18+T,kk),4)}, {rr(OF(s,2*kp+kk,u),4)}, {c}')
            busy = False
            if (g & 7) < 2:
                T2, s2 = (T + 2) % 18, s + (T + 2) // 18
                if s2 < 8:
                    for h in range(2): e(w3read(s2, T2, g & 1, h))
                    busy = True
            if g + 1 in pos:
                for s_ in pos[g + 1][0]: e(s_)
            if g in pos:
                e(pos[g][1]); VM.add(pos[g][2]); busy = True
            if s in (0, 3) and g == opt['pollpos']:
                e(f'buffer_load_dwordx4 v[2:5], off, s[{sF}:{sF+3}], s{sFA} sc1'); VM.add('poll'); busy = True
            if s == 7 and g >= 80 and (g & 7) == 7 and not opt['noex']:
                m = (g - 80) >> 3
                snd += [f'buffer_store_dwordx4 {rr(ACC3(m,u2),4)}, v{RA(m>>2)}, s[{sR}:{sR+3}], s{sRS(u2)} offen offset:{(m&3)*1024} sc1' for u2 in (1, 2, 3)]
            if snd and (g & 1) == 1 and not busy: e(snd.pop(0)); busy = True
            if not busy and g >= 2:
                src = cv if cv else late
                for _ in range(2):
                    if src: e(src.pop(0))
            if s == 1 and g == 64: assert not cv
    assert not late
    trace()
    for s_ in snd: e(s_)
    e('s_nop 4')
    if not opt['noex']:
        for u2 in (1, 2, 3): e(f'buffer_store_dwordx4 {rr(ACC3(8,u2),4)}, v{RA(2)}, s[{sR}:{sR+3}], s{sRS(u2)} offen sc1')
    e('v_mov_b32 v2, 1')
    e('s_waitcnt vmcnt(0)'); e('s_barrier')
    e(f'buffer_store_dword v2, v{FAD}, s[{sF}:{sF+3}], 0 offen sc1')
    trace()
    e(f'buffer_load_dwordx4 v[2:5], off, s[{sF}:{sF+3}], s{sFC} sc1'); e('s_waitcnt vmcnt(0)')
    flagcheck('C', sFC, 1)
    trace()
    VM.q = []
    IN = lambda n, u: 68 + (n * 3 + u - 1) * 4
    for n in range(9):
        for u in (1, 2, 3):
            e(f'buffer_load_dwordx4 {vr(IN(n,u),4)}, v{RA(n>>2)}, s[{sR}:{sR+3}], s{sRL(u)} offen offset:{(n&3)*1024} sc1'); VM.add(n)
    for n in range(9):
        wait(vm=n)
        a = ACC3(n, 0)[1]
        for u in (1, 2, 3):
            for j in range(2): e(f'v_pk_add_f32 {vr(a+2*j,2)}, {vr(a+2*j,2)}, {vr(IN(n,u)+2*j,2)}')
        d = 180 + (n >> 1) * 4 + (n & 1) * 2
        for j in range(2): e(f'v_cvt_pk_bf16_f32 v{d+j}, v{a+2*j}, v{a+2*j+1}')
        if n & 1:
            d -= 2
            e('s_nop 1')
            e(f'v_permlane16_swap_b32 v{d}, v{d+2}'); e(f'v_permlane16_swap_b32 v{d+1}, v{d+3}')
            e(f'buffer_store_dwordx4 {vr(d,4)}, v{OUTA}, s[{sOut}:{sOut+3}], 0 offen offset:{(n>>1)*64}'); VM.add('out')
        elif n == 8:
            e(f'buffer_store_dwordx2 {vr(d,2)}, v{OUTB}, s[{sOut}:{sOut+3}], 0 offen offset:256')

def descriptor(name, vg=512):
    return f'''.amdhsa_kernel {name}
  .amdhsa_next_free_vgpr {vg}
  .amdhsa_next_free_sgpr 102
  .amdhsa_accum_offset 256
  .amdhsa_group_segment_fixed_size 0
  .amdhsa_kernarg_size 104
  .amdhsa_user_sgpr_count 2
  .amdhsa_user_sgpr_kernarg_segment_ptr 1
  .amdhsa_system_sgpr_workgroup_id_x 1
.end_amdhsa_kernel'''

L.append(f'''; one launch: projection of q, attention (two heads per workgroup), output projection over eight heads, four-way sum
; @launch grid=(256,1,1) block=(256,1,1) lds=163840
.amdgcn_target "amdgcn-amd-amdhsa--gfx950"
.text
.globl {NAME}_kernel
.p2align 8
.type {NAME}_kernel,@function
{NAME}_kernel:''')
setup1()
qproj_start()
vmq = list(VM.q)
setup1b()
lab('L_go')
qproj()
attention()
tail()
oproj()
if opt['trace']:
    trace()
    e('s_lshl_b32 s3, s2, 2'); e(f's_add_u32 s3, s3, s{sWV}'); e('s_lshl_b32 s3, s3, 8')
    e('v_lshl_add_u32 v8, v0, 2, s3')
    e(f'buffer_store_dword v27, v8, s[{sST}:{sST+3}], 0 offen')
e('s_endpgm')
lab('L_redo')
e(f's_mov_b32 s{sSAFE}, 1'); e(f's_mov_b32 s{sFIRST}, 0'); e('s_waitcnt vmcnt(0) lgkmcnt(0)'); e('s_barrier')
e('v_and_b32 v1, 15, v0'); e('v_lshrrev_b32 v2, 4, v0')
staging()
VM.q = []
qproj_start()
assert VM.q == vmq
e('s_branch L_go')
for s_ in OUTL:
    if s_.endswith(':'): L.append(s_)
    else: e(s_)
lab('L_end')
e('s_endpgm')
L.append('.section .rodata,"a"\n.p2align 6\n' + descriptor(NAME + '_kernel'))
open(sys.argv[1], 'w').write('\n'.join(L) + '\n')
```

```python
import sys
NAME = 'concat_heads__mha_block_cached__gqa_block_cached__near_ridge'
opt = dict(xnt=0, wnt=0, trace=0, forcesafe=0, cpf=1, cpfs=5, l2p=3, gpol=1, gpos=100, dsp=7, wog=1, wogp=0, wont=0,
           opol=2, olp=0, only=0, spin=15, perm=0, wogpos=3, wogs=123, wogn=3, wog2=0, pkmul=0, postA=90, postB1=330, postB2=526, atpos=1, o2pos=50, o2sp=23, o1sp=26, o1st=26, vsp=3, early=1, nost=0, outp=0, o1aft=1, cvn=5, postA1=-1)
for a in sys.argv[2:]:
    k, v = a.split('='); assert k in opt, k; opt[k] = int(v)

POL = ['', ' nt', ' sc1', ' sc0 sc1', ' sc1 nt', ' sc0 sc1 nt']
vr = lambda b, n: f'v[{b}:{b+n-1}]'
ar = lambda b, n: f'a[{b}:{b+n-1}]'
def rr(kb, n): return vr(kb[1], n) if kb[0] == 'v' else ar(kb[1], n)
MF = 'v_mfma_f32_16x16x32_bf16'
L = []
INIT = [0]
def e(s):
    if INIT[0] and opt['only'] and (s.startswith('v_') or s.startswith('ds_')) and not s.startswith('v_writelane'): return
    L.append('    ' + s)
def lab(s): L.append(s + ':')
def et(s):
    if isinstance(s, tuple):
        e(s[0])
        if not s[0].startswith('s_nop'): VM.add(s[1])
    elif callable(s): s()
    else: e(s)

class Cnt:
    def __init__(self): self.q = []
    def add(self, tag): self.q.append(tag)
    def need(self, tags):
        if not isinstance(tags, list): tags = [tags]
        idx = [i for i, t in enumerate(self.q) if t in tags]
        if not idx: return None
        n = len(self.q) - 1 - idx[-1]
        self.q = self.q[idx[-1] + 1:]
        return n
VM, LG = Cnt(), Cnt()
def wait(vm=None, lg=None, lg0=False):
    p = []
    if vm is not None:
        n = VM.need(vm)
        if n is not None: p.append(f'vmcnt({min(n,63)})')
    if lg0:
        LG.q = []; p.append('lgkmcnt(0)')
    elif lg is not None:
        n = LG.need(lg)
        if n is not None: p.append(f'lgkmcnt({min(n,15)})')
    if p: e('s_waitcnt ' + ' '.join(p))

WS_O = 0
WS_R = 64 * 524288
RSZ = 4 * 3 * 4 * 5120
WS_F = WS_R + 64 * RSZ
WS_STAMP = 0x4000000
OOB = 0x80000000
LF1, LF2 = 0x27e00, 0x27e10

sK, sV, sX, sW, sO, sWO, sR, sF, sD, sOut, sCP, sST = 8, 12, 16, 20, 24, 28, 64, 68, 72, 76, 80, 84
sKM = lambda i: 32 + i
sVM = lambda i: 36 + i
sP, sHP, sB, sWV = 40, 41, 42, 43
sKO, sVO, sXO, sWQO = 44, 45, 46, 47
sW8 = 48
sBLK, sLOOP, sSAFE, sKQ, sNQ = 49, 50, 51, 52, 53
sFAIL = 54
sPAD, sFIRST, sFA, sFC, sW9, sEXIT, sF1 = 88, 89, 90, 91, 92, 93, 94
sWH = lambda d: 32 + d
sOH = lambda d: 36 + d
sOT = lambda t: 56 + t
sWOO = 60
sOS = 95
sRS = lambda u: 44 + u - 1
sRL = lambda u: 61 + u - 1
KA = lambda ks: 8 + ks
VA = lambda dt: 12 + dt
KD = lambda m: 20 + m
VD = lambda m: 24 + (m & 1)
OA = 26
S = lambda buf, kt, qt: 32 + buf * 32 + (qt * 2 + kt) * 4
P = lambda buf, qt: 96 + buf * 16 + qt * 4
Q = lambda qt, ks: 160 + (qt * 4 + ks) * 4
NM = lambda qt: 224 + qt * 4
def PARK(i):
    if i < 16: return ('v', 240 + i)
    if i < 20: return ('v', 28 + i - 16)
    return ('a', 212 + i - 20)
O = lambda dt, qt: (dt * 4 + qt) * 4
KF = lambda kt, ks: 128 + (kt * 4 + ks) * 4
VF = lambda d4, ks: 160 + (d4 * 2 + ks) * 4
LS = lambda qt: 192 + qt * 4
ONES = 208
RC = lambda qt: 224 + 2 * qt
XF = lambda buf, qt, ks: 32 + buf * 32 + (qt * 2 + ks) * 4
WFR = lambda T, ks: 96 + (T & 3) * 8 + ks * 4
XD = lambda m: 128 + m
WD = lambda m: 136 + m
WA = lambda hi, t: 144 + hi * 8 + t
XA = lambda ks: 6 + ks
ACC = lambda T, qt: (((T + 8) & 15) * 4 + qt) * 4
XSLOT = [32768, 0]
WSLOT = [98304, 65536, 131072]
GX, GW, GD = 28, 26, 29
WOA = [6, 7, 20, 21, 22, 23, 24, 25, 1]
WR = lambda sl: 8 + sl
FAD = 11
RA = lambda j: 12 + j
OUTA, OUTB = 15, 16
W3SLOT = [0, 98304]
sWC = 99
WF3 = lambda T, kk: 144 + (T & 3) * 8 + kk * 4
def ACC3(n, u):
    if u < 3: return ('v', 32 + (u * 9 + n) * 4)
    return ('v', 140 + 4 * n) if n < 5 else ('a', 128 + 4 * (n - 5))
STG = [(0, 0), (0, 1), (1, 0), (2, 0), (3, 0), (1, 1), (2, 1), (3, 1)]
def OF(s, ks, u):
    if s == 0: return PARK((u * 4 + ks) * 4)
    if s == 1: return ('v', 160 + (u * 4 + ks) * 4)
    return ('a', (s & 1) * 64 + ks * 16 + u * 4)

def dma_k(m): return f'buffer_load_dwordx4 v{KD(m)}, s[{sK}:{sK+3}], s{sKO} offen offset:{m*1024} nt lds'
def dma_v(m): return f'buffer_load_dwordx4 v{VD(m)}, s[{sV}:{sV+3}], s{sVO} offen offset:{m*1024} nt lds'

def srd(s, lo, hi, off, size):
    if off is None:
        e(f's_mov_b32 s{s}, s{lo}'); e(f's_mov_b32 s{s+1}, s{hi}')
    else:
        e(f's_add_u32 s{s}, s{lo}, {off}'); e(f's_addc_u32 s{s+1}, s{hi}, 0')
    e(f's_mov_b32 s{s+2}, {size}'); e(f's_mov_b32 s{s+3}, 0x20000')

def trace():
    if opt['trace']:
        e('s_memtime s[96:97]' if opt['trace'] == 1 else 's_memrealtime s[96:97]'); e('s_mov_b32 s98, m0'); e('s_mov_b32 m0, s100'); e('s_waitcnt lgkmcnt(0)')
        e('v_writelane_b32 v27, s96, m0'); e('s_mov_b32 m0, s98')
        e('s_add_u32 s100, s100, 1')

def trace_at(lane):
    if opt['trace']:
        e('s_memrealtime s[96:97]'); e('s_waitcnt lgkmcnt(0)'); e(f'v_writelane_b32 v27, s96, {lane}')

def code_srd(s, entry, end):
    e(f's_getpc_b64 s[{s}:{s+1}]')
    lab('L_pc')
    e(f's_sub_u32 s{s}, s{s}, L_pc-{entry}'); e(f's_subb_u32 s{s+1}, s{s+1}, 0')
    e(f's_mov_b32 s{s+2}, {end}-{entry}'); e(f's_mov_b32 s{s+3}, 0x20000')
def code_pf(off, vt, dst=None, st=3):
    return [f's_lshr_b32 s{st}, s2, 3', f's_lshl_b32 s{st}, s{st}, 2', f's_add_u32 s{st}, s{st}, s{sWV}', f's_lshl_b32 s{st}, s{st}, 8', f's_add_u32 s{st}, s{st}, {off}',
            f'v_lshlrev_b32 v{vt}, 7, v0', 's_mov_b64 exec, 3', f'buffer_load_dword {dst or "v%d" % vt}, v{vt}, s[{sCP}:{sCP+3}], s{st} offen', 's_mov_b64 exec, -1']

def setup1():
    e('s_cmp_ge_u32 s2, 256')
    e('s_cbranch_scc1 L_end')
    if opt['perm']:
        e('s_and_b32 s3, s2, 7'); e('s_lshl_b32 s3, s3, 3'); e('s_lshr_b32 s4, s2, 3'); e('s_and_b32 s4, s4, 7'); e('s_or_b32 s3, s3, s4')
        e('s_and_b32 s2, s2, 0xc0'); e('s_or_b32 s2, s2, s3')
    if opt['trace']: e('s_mov_b32 s100, 0'); trace()
    e('s_and_b32 s3, s2, 7'); e('s_lshr_b32 s4, s2, 3')
    e(f's_lshr_b32 s{sP}, s3, 2')
    e(f's_mul_i32 s5, s{sP}, 40')
    e('s_add_u32 s6, s0, s5'); e('s_addc_u32 s7, s1, 0')
    e('s_load_dwordx8 s[56:63], s[6:7], 0')
    e('s_load_dwordx2 s[94:95], s[6:7], 32')
    e('s_load_dwordx4 s[96:99], s[0:1], 80')
    e('s_load_dwordx2 s[50:51], s[0:1], 96')
    e(f's_and_b32 s{sKQ}, s3, 3'); e(f's_and_b32 s{sNQ}, s4, 3'); e(f's_lshr_b32 s{sB}, s4, 2')
    e(f's_lshl_b32 s3, s{sKQ}, 2'); e(f's_add_u32 s{sHP}, s3, s{sNQ}')
    e('v_lshrrev_b32 v1, 6, v0'); e('v_and_b32 v0, 63, v0'); e(f'v_readfirstlane_b32 s{sWV}, v1')
    e('v_and_b32 v1, 15, v0')
    e('v_lshrrev_b32 v2, 4, v0')
    e(f's_lshl_b32 s{sW8}, s{sWV}, 13')
    if opt['cpf']:
        code_srd(sCP, NAME + '_kernel', 'L_end')
        for s_ in code_pf(0, 31): e(s_)
    staging()
    e('s_waitcnt lgkmcnt(0)')
    e(f's_mul_i32 s3, s{sB}, 276480'); srd(sX, 56, 57, 's3', 276480)
    e(f's_lshl_b32 s3, s{sHP}, 9'); srd(sW, 62, 63, 's3', 0)
    e(f's_sub_u32 s{sW+2}, {576*8192}, s3')

def staging():
    e(f's_mul_i32 s3, s{sWV}, {64*1152}')
    e('v_lshrrev_b32 v3, 3, v0'); e('v_mul_u32_u24 v3, 1152, v3'); e('v_add_u32 v3, s3, v3')
    e('v_and_b32 v4, 7, v0'); e('v_xor_b32 v4, v4, v2')
    e(f'v_lshl_add_u32 v{XD(0)}, v4, 4, v3'); e('v_xor_b32 v4, 4, v4'); e(f'v_lshl_add_u32 v{XD(1)}, v4, 4, v3')
    for t in range(3, -1, -1):
        e(f's_add_u32 s3, s{sKQ}, {t}'); e('s_and_b32 s3, s3, 3'); e('s_mul_i32 s3, s3, 18432')
        for o in (1, 0):
            m = 2 * t + o
            e(f's_add_u32 s4, s3, {o*8192}'); e(f'v_add_u32 v{XD(m)}, s4, v{XD(o)}')
    e(f's_lshl_b32 s3, s{sWV}, 17')
    e('v_lshrrev_b32 v3, 5, v0'); e('v_lshl_add_u32 v5, v3, 13, s3')
    e('v_and_b32 v4, 31, v0')
    for m in range(8):
        e(f'v_or_b32 v6, {((2*m)&3) | ((m>>2)<<2)}, v3'); e('v_lshlrev_b32 v6, 1, v6')
        e('v_xor_b32 v6, v6, v4'); e('v_lshl_add_u32 v6, v6, 4, v5')
        e(f'v_add_u32 v{WD(m)}, {m*16384 - (m&3)*1024}, v6')
    if opt['l2p']:
        e(f's_mul_i32 s3, s{sNQ}, 60'); e(f's_mul_i32 s4, s{sWV}, 15'); e('s_add_u32 s3, s3, s4'); e('s_mul_i32 s3, s3, 1152')
        e(f'v_mul_u32_u24 v4, 1152, v0'); e('v_cmp_gt_u32 vcc, 15, v0'); e('v_add_u32 v4, s3, v4')
        e(f'v_add_u32 v5, {(128 - 15*1152) & 0xffffffff}, v4'); e('v_cndmask_b32 v4, v5, v4, vcc')
        e('v_cmp_gt_u32 vcc, 30, v0'); e('v_bfrev_b32 v6, 1')
        e(f's_lshl_b32 s3, s{sB}, 2'); e(f'v_cndmask_b32 v{GX}, v6, v4, vcc')
        e(f's_add_u32 s3, s3, s{sWV}'); e('s_lshl_b32 s3, s3, 14')
        e('v_and_b32 v5, 3, v0'); e('v_lshl_add_u32 v5, v5, 7, s3'); e('v_bfe_u32 v3, v0, 2, 1'); e('v_lshl_add_u32 v5, v3, 13, v5')
        e('v_cmp_gt_u32 vcc, 16, v0'); e('v_lshrrev_b32 v3, 3, v0'); e('v_lshl_add_u32 v5, v3, 19, v5')
        e(f'v_cndmask_b32 v{GW}, v6, v5, vcc')

def setup1b():
    e(f's_lshl_b32 s3, s{sB}, 5'); e(f's_lshl_b32 s4, s{sHP}, 1'); e('s_add_u32 s3, s3, s4'); e('s_lshl_b32 s3, s3, 18')
    srd(sK, 58, 59, 's3', 524288); srd(sV, 60, 61, 's3', 524288)
    e(f's_mul_i32 s3, s{sKQ}, 1179648'); srd(sWO, 94, 95, 's3', 1179648)
    e(f's_lshl_b32 s5, s{sP}, 3'); e(f's_add_u32 s5, s5, s{sB}'); e('s_lshl_b32 s5, s5, 2')
    e(f's_add_u32 s6, s5, s{sKQ}'); e(f's_add_u32 s7, s5, s{sNQ}')
    e('s_lshl_b32 s3, s6, 19'); srd(sO, 50, 51, 's3', 524288)
    e(f's_mul_i32 s3, s7, {RSZ}'); e(f's_add_u32 s3, s3, {WS_R}'); srd(sR, 50, 51, 's3', RSZ)
    srd(sF, 50, 51, WS_F, 16384)
    srd(sOut, 96, 97, None, 8*240*1152*2); srd(sD, 98, 99, None, 256)
    if opt['trace']: srd(sST, 50, 51, WS_STAMP, 0x100000)
    e(f's_lshl_b32 s{sFA}, s6, 7'); e(f's_lshl_b32 s{sFC}, s7, 7'); e(f's_add_u32 s{sFC}, s{sFC}, 8192')
    e(f's_lshl_b32 s3, s{sWV}, 4'); e(f's_add_u32 s{sFA}, s{sFA}, s3'); e(f's_add_u32 s{sFC}, s{sFC}, s3')
    e(f's_sub_u32 s3, 3, s{sKQ}'); e(f's_cmp_eq_u32 s{sWV}, 3'); e(f's_cselect_b32 s{sPAD}, s3, 7')
    e(f's_mul_i32 s{sW9}, s{sWV}, 9216')
    e(f's_mov_b32 s{sSAFE}, {opt["forcesafe"]}'); e(f's_mov_b32 s{sFIRST}, 1')

def setup2():
    e('v_lshrrev_b32 v3, 1, v0'); e('v_and_b32 v3, 7, v3'); e('v_xor_b32 v3, v3, v2')
    e(f'v_lshl_add_u32 v4, v1, 7, s{sW8}')
    e(f'v_lshl_add_u32 v{XA(0)}, v3, 4, v4'); e('v_xor_b32 v3, 4, v3'); e(f'v_lshl_add_u32 v{XA(1)}, v3, 4, v4')
    e('v_bfe_u32 v3, v0, 2, 2')
    e('v_lshl_add_u32 v4, v2, 3, v3'); e('v_lshlrev_b32 v4, 9, v4'); e('v_add_u32 v4, 0x10000, v4')
    e('v_and_b32 v5, 3, v0')
    e('v_lshl_add_u32 v4, v5, 3, v4')
    e('v_and_b32 v5, 1, v2'); e('v_lshl_or_b32 v3, v5, 2, v3')
    for t in range(8):
        e(f'v_xor_b32 v5, {t}, v3'); e(f'v_lshl_add_u32 v{WA(0,t)}, v5, 5, v4')
    for t in range(8): e(f'v_add_u32 v{WA(1,t)}, 0x8000, v{WA(0,t)}')
    e('v_lshrrev_b32 v3, 1, v2'); e('v_and_b32 v4, 1, v2'); e('v_lshl_or_b32 v3, v4, 1, v3')
    for ks in range(4):
        e(f'v_or_b32 v4, {4*ks}, v3'); e('v_xor_b32 v4, v4, v1'); e('v_lshlrev_b32 v4, 4, v4')
        e(f'v_lshl_add_u32 v{KA(ks)}, v1, 8, v4')
    e('v_lshrrev_b32 v4, 2, v0')
    e('v_lshlrev_b32 v5, 8, v4'); e('v_and_b32 v3, 3, v0'); e('v_lshl_add_u32 v5, v3, 3, v5'); e('v_add_u32 v5, 0x10000, v5')
    e('v_and_b32 v4, 7, v4')
    for dt in range(8):
        e(f'v_xor_b32 v3, {dt}, v4'); e(f'v_lshl_add_u32 v{VA(dt)}, v3, 5, v5')
    e(f's_lshl_b32 s3, s{sWV}, 12')
    e('v_lshl_add_u32 v5, v2, 8, s3')
    for m in range(4):
        e(f'v_or_b32 v3, {4*m}, v2'); e('v_xor_b32 v3, v3, v1'); e(f'v_lshl_add_u32 v{KD(m)}, v3, 4, v5')
    for m in range(2):
        e(f'v_or_b32 v3, {4*m}, v2'); e('v_lshlrev_b32 v3, 1, v3'); e('v_xor_b32 v3, v3, v1'); e(f'v_lshl_add_u32 v{VD(m)}, v3, 4, v5')
    for g in range(4):
        e(f's_add_u32 s{sKM(g)}, s3, {g*16384}')
        e(f's_add_u32 s{sVM(g)}, s3, {65536 + ((g+2)&3)*16384}')

def x_dma(s, m):
    r = []
    if m & 1 == 0: r.append(('s', f's_add_u32 m0, s{sW8}, {XSLOT[s&1] + (m>>1)*2048}'))
    r.append(('g', f'buffer_load_dwordx4 v{XD(m)}, s[{sX}:{sX+3}], s{sXO} offen offset:{(m&1)*1024}{POL[opt["xnt"]]} lds', ('X', s)))
    if m == 7: r.append(('a', f's_add_u32 s{sXO}, s{sXO}, 128'))
    return r
def w_dma(s, m):
    r = []
    if m & 3 == 0: r.append(('s', f's_add_u32 m0, s{sW8}, {WSLOT[s%3] + (m>>2)*4096}'))
    r.append(('g', f'buffer_load_dwordx4 v{WD(m)}, s[{sW}:{sW+3}], s{sWQO} offen offset:{(m&3)*1024}{POL[opt["wnt"]]} lds', ('W', s)))
    if m == 7: r.append(('a', f's_add_u32 s{sWQO}, s{sWQO}, 524288'))
    return r
def kv_dma(kind, t, m):
    r = []
    if m == 0: r.append(('s', f's_mov_b32 m0, s{sKM(t) if kind == "K" else sVM(t)}'))
    r.append(('g', dma_k(m) if kind == 'K' else dma_v(m), (kind, t)))
    if m == 3:
        o = sKO if kind == 'K' else sVO
        r.append(('a', f's_add_u32 s{o}, s{o}, 16384'))
    return r
def emit_dma_plain(items):
    for it in items:
        e(it[1])
        if it[0] == 's': e('s_nop 0')
        if it[0] == 'g': VM.add(it[2])
def wread(s, T, ks, h):
    sl = WSLOT[s % 3]
    hi = 0 if sl == 65536 else 1
    base = sl - 65536 - hi * 32768
    off = base + ks * 16384 + h * 2048 + (T >> 3) * 256
    assert off < 65536
    LG.add(('W', s, T))
    return f'ds_read_b64_tr_b16 {vr(WFR(T,ks)+2*h,2)}, v{WA(hi,T&7)} offset:{off}'
def xread(s, qt, ks):
    off = XSLOT[s & 1] + qt * 2048
    LG.add(('X', s))
    return f'ds_read_b128 {vr(XF(s&1,qt,ks),4)}, v{XA(ks)} offset:{off}'
def gather(st):
    VM.add('g'); VM.add('g')
    return [f's_mov_b32 s3, {st*128}', f's_mov_b32 s4, {st*524288}',
            f'buffer_load_dword v{GD}, v{GX}, s[{sX}:{sX+3}], s3 offen{POL[opt["gpol"]]}',
            f'buffer_load_dword v{GD}, v{GW}, s[{sW}:{sW+3}], s4 offen{POL[opt["gpol"]]}']

def count_in():
    wait(vm='clr')
    e(f's_cmp_eq_u32 s{sWV}, 0'); e(f's_cselect_b32 s3, 0, {OOB}')
    e('v_bfrev_b32 v30, 1'); e('v_writelane_b32 v30, s3, 0'); e(f'v_mov_b32 v3, s{sFIRST}')
    e(f'buffer_atomic_add v3, v30, s[{sD}:{sD+3}], 0 offen sc1'); VM.add('cnt')

def qproj_start():
    e(f's_mov_b32 s{sXO}, 0'); e(f's_mov_b32 s{sWQO}, 0')
    if opt['l2p'] & 2:
        for s_ in gather(0): e(s_)
    for m in range(8): emit_dma_plain(x_dma(0, m))
    for m in range(8): emit_dma_plain(w_dma(0, m))

def qproj():
    e(f's_mov_b32 s{sKO}, 0'); e(f's_mov_b32 s{sVO}, 0')
    setup2()
    wait(vm=('X', 0))
    for qt in range(4):
        for ks in range(2): e(xread(0, qt, ks))
    wait(vm=('W', 0)); e('s_barrier')
    trace()
    for T in range(2):
        for ks in range(2):
            for h in range(2): e(wread(0, T, ks, h))
    for s in range(9):
        dpos = {}
        if s < 7:
            dm = [x_dma(s + 2, m) for m in range(8)] + [w_dma(s + 2, m) for m in range(8)]
        elif s == 7:
            dm = [kv_dma('K', 0, m) for m in range(4)] + [kv_dma('K', 1, m) for m in range(4)] + [kv_dma('V', 0, m) for m in range(4)]
        else:
            dm = [kv_dma('K', 2, m) for m in range(4)] + [kv_dma('V', 1, m) for m in range(4)]
        if s == 0:
            dm = [x_dma(1, m) for m in range(8)] + [w_dma(1, m) for m in range(8)] + dm
            for n, it in enumerate(dm): dpos[4 * n + 2] = it
            xpos = {66 + 6 * n: n for n in range(8)}
        else:
            for n, it in enumerate(dm): dpos[(n * opt['dsp'] // 2) * 2 + 4] = it
            xpos = {8 * (6 + n) + 2: n for n in range(8)} if s < 8 else {}
        for g in range(128):
            T, qt, ks = g >> 3, (g >> 1) & 3, g & 1
            if g == 112 and s < 8:
                wait(vm=('W', s + 1), lg0=True); e('s_barrier'); trace()
            elif g & 7 == 0:
                if g == 0: wait(lg=('X', s))
                wait(lg=('W', s, T))
            if g in xpos and xpos[g] == 0: wait(vm=('X', s + 1))
            c = '0' if (s == 0 and ks == 0) else ar(ACC(T, qt), 4)
            e(f'{MF} {ar(ACC(T,qt),4)}, {vr(WFR(T,ks),4)}, {vr(XF(s&1,qt,ks),4)}, {c}')
            if (g & 7) < 2:
                T2, s2 = (T + 2) & 15, s + ((T + 2) >> 4)
                if s2 < 9:
                    for h in range(2): e(wread(s2, T2, g & 1, h))
            if g in xpos: e(xread(s + 1, xpos[g] >> 1, xpos[g] & 1))
            if opt['cpf'] and s == opt['cpfs'] and g == 117:
                for s_ in code_pf(f'L_att-{NAME}_kernel', 31): e(s_)
                VM.add('cpf')
            if opt['l2p'] and ((s == 0 and g == 3) or (g == opt['gpos'] + 1 and s in (1, 3, 5))):
                for s_ in gather(2 if s == 0 else s + 3): e(s_)
            if g == 119 and s == 1:
                e(f's_lshl_b32 s3, s{sNQ}, 2'); e(f's_add_u32 s3, s3, s{sFA}'); e(f's_lshl_b32 s4, s{sKQ}, 2'); e(f's_add_u32 s4, s4, s{sFC}')
                e(f's_sub_u32 s4, s4, 64'); e(f's_cmp_eq_u32 s{sWV}, 0'); e(f's_cselect_b32 s5, s{sFIRST}, 0'); e('s_lshl_b32 s5, s5, 3')
                e('v_mov_b32 v3, s4'); e('v_cmp_gt_u32 vcc, 4, v0'); e('v_mov_b32 v30, s3'); e('v_bfrev_b32 v4, 1')
                e('v_cndmask_b32 v30, v3, v30, vcc'); e('v_cmp_gt_u32 vcc, s5, v0'); e('v_lshl_add_u32 v30, v0, 4, v30'); e('v_mov_b32 v3, 0')
                e('v_cndmask_b32 v30, v4, v30, vcc')
                e(f'buffer_store_dword v3, v30, s[{sF}:{sF+3}], 0 offen sc1'); VM.add('clr')
            if g == 119 and s == 3 and opt['atpos'] == 0: count_in()
            if g == opt['wogs'] and opt['wogpos'] == 2 and opt['wog']:
                if s == 0:
                    for s_ in wo_pull_pre(18 if opt['wog2'] else 12): e(s_)
                if opt['wog2']:
                    if s < 4:
                        for s_ in wo_piece(s, 18, 5, GD, opt['wogp']): et(s_)
                    if 2 <= s < 6:
                        for s_ in wo_piece(s - 2, 18, 5, GD, 0): et(s_)
                elif s < 6:
                    for s_ in wo_piece(s, 12, 5, GD, opt['wogp']): et(s_)
            if g + 1 in dpos:
                for it in dpos[g + 1]:
                    if it[0] == 's': e(it[1])
            if g in dpos:
                for it in dpos[g]:
                    if it[0] == 'g': e(it[1]); VM.add(it[2])
            if g - 1 in dpos:
                for it in dpos[g - 1]:
                    if it[0] == 'a': e(it[1])
    trace()
    if opt['atpos'] == 1: count_in()
    e('s_mov_b32 s58, 0x3e0293ee'); e('s_mov_b32 s59, 0x3e0293ee')
    def conv(T0, dst):
        n = 0
        for t in range(4):
            for qt in range(4):
                tb = 32 + (n & 1) * 8; n += 1
                for o in range(2):
                    for r in range(4): e(f'v_accvgpr_read_b32 v{tb+4*o+r}, a{ACC(T0+2*t+o,qt)+r}')
                for j in range(4): e(f'v_pk_mul_f32 {vr(tb+2*j,2)}, {vr(tb+2*j,2)}, s[58:59]')
                ds = [dst((qt*4+t)*4 + j) for j in range(4)]
                tmp = [d[1] if d[0] == 'v' else 48 + j for j, d in enumerate(ds)]
                for j in [0, 2, 1, 3]: e(f'v_cvt_pk_bf16_f32 v{tmp[j]}, v{tb+2*j}, v{tb+2*j+1}')
                e('s_nop 0')
                e(f'v_permlane16_swap_b32 v{tmp[0]}, v{tmp[2]}'); e(f'v_permlane16_swap_b32 v{tmp[1]}, v{tmp[3]}')
                for j, d in enumerate(ds):
                    if d[0] == 'a': e(f'v_accvgpr_write_b32 a{d[1]}, v{tmp[j]}')
    conv(0, lambda i: ('v', 160 + i))
    conv(8, PARK)
    e(f's_lshl_b32 s3, s{sWV}, 14'); e(f'v_lshl_add_u32 v{OA}, v0, 4, s3')
    e('v_mov_b32 v4, 0x3f803f80')
    for r in range(4): e(f'v_accvgpr_write_b32 a{ONES+r}, v4')

def qk(buf, kt, qt, ks, c0=False):
    c = ('0' if c0 else vr(NM(qt), 4)) if ks == 0 else vr(S(buf, kt, qt), 4)
    return f'{MF} {vr(S(buf,kt,qt),4)}, {ar(KF(kt,ks),4)}, {vr(Q(qt,ks),4)}, {c}'
def pv(pb, dt, qt, ks, first):
    c = '0' if (first and ks == 0) else ar(O(dt, qt), 4)
    return f'{MF} {ar(O(dt,qt),4)}, {ar(VF(dt&3,ks),4)}, {vr(P(pb+ks,qt),4)}, {c}'
def sm(pb, qt, ks, first):
    c = '0' if (first and ks == 0) else ar(LS(qt), 4)
    return f'{MF} {ar(LS(qt),4)}, {ar(ONES,4)}, {vr(P(pb+ks,qt),4)}, {c}'
def kread(unit, kt, ks): return f'ds_read_b128 {ar(KF(kt,ks),4)}, v{KA(ks)} offset:{(unit % 8) * 8192 + kt * 4096}'
def vread(tile, dt, ks, h): return f'ds_read_b64_tr_b16 {ar(VF(dt&3,ks)+2*h,2)}, v{VA(dt)} offset:{((tile + 2) % 4) * 16384 + (32*ks + 16*h) * 256}'
def xop(b, n):
    qt, kt, r = n >> 3, (n >> 2) & 1, n & 3
    return f'v_exp_f32 v{S(b,kt,qt)+r}, v{S(b,kt,qt)+r}'
def cop(u, n):
    qt, kt, r = n >> 2, (n >> 1) & 1, (n & 1) * 2
    return f'v_cvt_pk_bf16_f32 v{P(u&3,qt)+(n&3)}, v{S(u&1,kt,qt)+r}, v{S(u&1,kt,qt)+r+1}'

PLAN_A = ['dC', 'x', 'd', 'x', 'c', 'x', 'dd', 'g', 'x', 'c', 'x', 'dd', 'g', 'x', 'c', 'x', 'dd', 'g', 'x', 'c', 'x', '', 'g',
          'x', 'c', 'x', 'x', 'c', 'x', 'x', 'c', 'x', 'x', 'c', 'x', 'x']
PLAN_B = ['tc', 'x', 'tt', 'x', 'tc', 'x', 'tt', 'x', 'tc', 'x', 'tt', 'x', 'tc', 'x', 'tt', 'x', 'tc', 'x', 'tt', 'x', 'tc', 'x', 'x', 'c',
          'x', 'x', '', '', '', '', '', '']

STQ, GS = [], [0, -99]
def step(u, dopv=True, doqk=True, dosm=True, dovr=True, dma=None, first=False, spill=True, fills=None, sumfirst=False, half=None, both=None, vms=None):
    b = u & 1; hh = u & 1; j = u >> 1
    pb = (2 * (j - 1)) & 3
    mf = []
    for d4 in range(4):
        for qt in range(4):
            for ks in range(2): mf.append(pv(pb, 4*hh + d4, qt, ks, first) if dopv else None)
    for qt in (2*hh, 2*hh+1):
        for ks in range(2): mf.append(sm(pb, qt, ks, first) if dopv else None)
    if sumfirst: mf = mf[32:] + mf[:32]
    for kt in range(2):
        for qt in range(4):
            for ks in range(4): mf.append(qk(b ^ 1, kt, qt, ks) if doqk else None)
    plan = PLAN_A + PLAN_B
    cntx = ''.join(plan)
    assert len(PLAN_A) == 36 and len(PLAN_B) == 32
    assert [cntx.count(z) for z in 'xcdtg'] == [32, 15, 8, 16, 4]
    nx = nc = nd = nt_ = ng = 0
    vtile = (u + 1) // 2 - 1; vh = (u + 1) & 1
    korder = [(kt, ks) for kt in range(2) for ks in range(4)]
    vorder = [(d4, ks, h) for d4 in range(4) for ks in range(2) for h in range(2)]
    fills = list(fills or [])
    lastx = False
    lastv = -9
    for g in range(68):
        if g == 36 and doqk: e('s_waitcnt lgkmcnt(0)')
        if mf[g]: e(mf[g]); lastx = False
        nxt = plan[g + 1] if g + 1 < 68 else ''
        if 'g' in nxt and ng == 0 and dma: e(f's_mov_b32 m0, s{dma[1]}'); lastx = False
        used = 0
        for z in plan[g]:
            if z == 'x':
                if dosm: e(xop(b, nx)); lastx = True; used += 1
                nx += 1
            elif z == 'c':
                assert nx >= 2 * nc + 2, (g, nx, nc)
                if dosm:
                    if lastx: e('s_nop 0')
                    e(cop(u, nc)); lastx = False; used += 1
                nc += 1
            elif z == 'C':
                if spill: e(cop(u - 1, 15)); lastx = False; used += 1
            elif z == 'd':
                if doqk: e(kread(u + 1, *korder[nd])); lastx = False; used += 1
                nd += 1
            elif z == 't':
                if dovr: e(vread(vtile, 4 * vh + vorder[nt_][0], vorder[nt_][1], vorder[nt_][2])); lastx = False; used += 1
                nt_ += 1
            elif z == 'g':
                if dma:
                    if not mf[g] and ng == 0: e('s_nop 0')
                    e(dma_k(ng) if dma[0] == 'k' else dma_v(ng)); lastx = False; used += 1
                    if len(dma) > 2: VM.add(dma[2])
                ng += 1
        took = False
        if mf[g] and fills and not used and g >= 1:
            took = True
            for s_ in fills.pop(0): et(s_)
            lastx = False
        free = 0 if not mf[g] or g < 1 else 2 if not used and not took else 1 if used == 1 and plan[g] in ('c', 'd') else 0
        if mf[g]: GS[0] += 1
        if free and STQ and GS[0] - GS[1] >= opt['o1sp'] and not (free == 1 and half) and not (vms and opt['o1aft']):
            for s_ in STQ.pop(0): et(s_)
            GS[1] = GS[0]; lastv = g; free = 0; lastx = False
        if free and vms and g - lastv >= opt['vsp']:
            for s_ in vms.pop(0): et(s_)
            lastv = g; free = 0; lastx = False
        if free == 1 and half: e(half.pop(0)); lastx = False; free = 0
        while free and both: et(both.pop(0)); lastx = False; free -= 1
        if g == 62 and dma:
            r = sKO if dma[0] == 'k' else sVO
            e(f's_add_u32 s{r}, s{r}, 16384')
    return fills

def first_step(dma):
    for kt in range(2):
        for ks in range(4): e(kread(0, kt, ks))
    e(f's_mov_b32 m0, s{dma[1]}'); e('s_nop 0')
    for m in range(4): e(dma_k(m))
    e(f's_add_u32 s{sKO}, s{sKO}, 16384')
    e('s_mov_b32 s3, 0x7149f2ca')
    for qt in range(4):
        e(f's_cmp_eq_u32 s{sPAD}, {qt}'); e(f's_cselect_b32 s{56+qt}, s3, 0xff800000')
    e('s_waitcnt lgkmcnt(0)')
    def mx(qt):
        a, b2 = S(0, 0, qt), S(0, 1, qt)
        t = 1 + qt
        return [f'v_max3_f32 v{t}, v{a}, v{a+1}, v{a+2}', f'v_max3_f32 v{t}, v{t}, v{a+3}, v{b2}',
                f'v_max3_f32 v{t}, v{t}, v{b2+1}, v{b2+2}', f'v_max3_f32 v{t}, v{t}, v{b2+3}, v{NM(qt)}']
    for qt in range(4):
        pend = mx(qt - 2) if qt >= 2 else []
        for kt in range(2):
            for ks in range(4):
                e(qk(0, kt, qt, ks, c0=True))
                if pend and ks & 1: e(pend.pop(0))
    for s_ in mx(2): e(s_)
    e('s_nop 3')
    for s_ in mx(3): e(s_)
    for sw in ('v_permlane16_swap_b32', 'v_permlane32_swap_b32'):
        for qt in range(4): e(f'v_mov_b32 v{NM(qt)}, v{1+qt}')
        e('s_nop 0')
        for qt in range(4): e(f'{sw} v{1+qt}, v{NM(qt)}')
        e('s_nop 0')
        if sw == 'v_permlane16_swap_b32':
            for qt in range(4): e(f'v_max_f32 v{1+qt}, v{1+qt}, v{NM(qt)}')
        else:
            for qt in range(4): e(f'v_max3_f32 v{1+qt}, v{1+qt}, v{NM(qt)}, s{56+qt}')
    for qt in range(4):
        for r in range(4): e(f'v_mul_f32 v{NM(qt)+r}, -1.0, v{1+qt}')
    for qt in range(4):
        for kt in range(2):
            for r in range(4): e(f'v_add_f32 v{S(0,kt,qt)+r}, v{S(0,kt,qt)+r}, v{NM(qt)}')

def pairs(l): return [l[i:i+2] for i in range(0, len(l), 2)]

def iteration(i):
    INIT[0] = 1
    e('s_waitcnt vmcnt(16) lgkmcnt(0)')
    e('s_barrier')
    trace()
    dk, dv = ('k', sKM((i + 3) % 4)), ('v', sVM((i + 2) % 4))
    if i == 0:
        first_step(dk)
        step(0, dopv=False, dovr=False, dma=dv, spill=False)
    elif i == 1:
        step(1, dopv=False, dma=dk)
        e('s_waitcnt lgkmcnt(0)')
        step(2, dma=dv, first=True)
    elif i == 2:
        step(3, dma=dk, first=True)
        e('s_waitcnt lgkmcnt(0)')
        step(4, dma=dv)
    elif i == 16:
        mv = []
        for n in range(64):
            k, r = PARK(n)
            mv.append(f'v_mov_b32 v{160+n}, v{r}' if k == 'v' else f'v_accvgpr_read_b32 v{160+n}, a{r}')
        cn = [[f's_cmp_eq_u32 s{sWV}, 0', f's_cselect_b32 s3, 0, {OOB}'], ['v_mov_b32 v7, s3'], [f'buffer_load_dword v7, v7, s[{sD}:{sD+3}], 0 offen sc1']]
        r = step(31, doqk=False, fills=cn)
        assert not r
        e('s_waitcnt lgkmcnt(0)')
        r = step(32, doqk=False, dosm=False, fills=pairs(mv))
        assert not r
        e('s_waitcnt lgkmcnt(0)')
        r = step(33, doqk=False, dosm=False, dovr=False, spill=False, sumfirst=True, fills=[[]] * 6 + sumcheck(LF1))
        assert not r
    else:
        step(2*i - 1, dma=dk)
        e('s_waitcnt lgkmcnt(0)')
        step(2*i, dma=dv)
    INIT[0] = 0

def sumcheck(lf):
    sor = [] if opt['only'] else [f's_or_b64 s[{sFAIL}:{sFAIL+1}], s[{sFAIL}:{sFAIL+1}], vcc']
    r = [['s_mov_b32 s60, 0x4e800000', f's_mov_b64 s[{sFAIL}:{sFAIL+1}], 0']]
    for qt in range(4):
        r.append([f'v_accvgpr_read_b32 v{RC(qt)}, a{LS(qt)}', f'v_cmp_ngt_f32 vcc, s60, v{RC(qt)}'])
        r.append(sor + [f'v_max_f32 v{RC(qt)}, 0x00800000, v{RC(qt)}'])
    for qt in range(4): r.append([f'v_rcp_f32 v{RC(qt)}, v{RC(qt)}'])
    r.append([f's_cmp_lg_u64 s[{sFAIL}:{sFAIL+1}], 0', 's_cselect_b32 s60, 1, 0'])
    r.append([f's_lshl_b32 s61, s{sWV}, 2', f's_add_u32 s61, s61, {lf & ~0xffff}'])
    r.append([f'v_mov_b32 v{RC(0)+1}, s60', f'v_mov_b32 v{RC(1)+1}, s61'])
    r.append([f'ds_write_b32 v{RC(1)+1}, v{RC(0)+1} offset:{lf & 0xffff}'])
    return r

def oconv(qt, t, tb, dst, pk=1):
    r = [f'v_accvgpr_read_b32 v{tb+j}, a{O(2*t+(j>>2),qt)+(j&3)}' for j in range(8)]
    if pk: r += [f'v_pk_mul_f32 {vr(tb+2*j,2)}, {vr(tb+2*j,2)}, {vr(RC(qt),2)} op_sel_hi:[1,0]' for j in range(4)]
    else: r += [f'v_mul_f32 v{tb+j}, v{tb+j}, v{RC(qt)}' for j in range(8)]
    for j in range(4):
        d = dst(j)
        r.append(f'v_cvt_pk_bf16_f32 v{d[1] if d[0] == "v" else tb+j}, v{tb+2*j}, v{tb+2*j+1}')
    for j in range(4):
        d = dst(j)
        if d[0] == 'a': r.append(f'v_accvgpr_write_b32 a{d[1]}, v{tb+j}')
    return r

def maxpass():
    e('v_and_b32 v1, 15, v0'); e('v_lshlrev_b32 v1, 4, v1'); e(f'v_xor_b32 v5, v{KA(0)}, v1')
    e(f's_lshl_b32 s56, s{sBLK}, 18'); e('s_mov_b32 s58, 0')
    lab('L_mp')
    e('s_add_u32 s57, s56, 4096')
    for kt in range(2):
        for ks in range(4):
            e(f'buffer_load_dwordx4 {ar(KF(kt,ks),4)}, v5, s[{sK}:{sK+3}], s{56+kt} offen offset:{ks*64}')
    e('s_waitcnt vmcnt(0)')
    for qt in range(4):
        for kt in range(2):
            for ks in range(4): e(qk(0, kt, qt, ks, c0=True))
    e('s_nop 7')
    for qt in range(4):
        a, b2 = S(0, 0, qt), S(0, 1, qt)
        t = NM(qt)
        e(f'v_max3_f32 v{t}, v{t}, v{a}, v{a+1}'); e(f'v_max3_f32 v{t}, v{t}, v{a+2}, v{a+3}')
        e(f'v_max3_f32 v{t}, v{t}, v{b2}, v{b2+1}'); e(f'v_max3_f32 v{t}, v{t}, v{b2+2}, v{b2+3}')
    e('s_add_u32 s56, s56, 8192'); e('s_add_u32 s58, s58, 1'); e('s_cmp_lt_u32 s58, 32'); e('s_cbranch_scc1 L_mp')

OUTL = []
def flagcheck(name, sline, val, scalar=False):
    red = ['v_min3_u32 v2, v2, v3, v4', 'v_min_u32 v2, v2, v5', 's_nop 0', 'v_readfirstlane_b32 s3, v2', f's_cmp_ge_u32 s3, {val}']
    first = ['s_min_u32 s4, s4, s5', 's_min_u32 s6, s6, s7', 's_min_u32 s4, s4, s6', f's_cmp_ge_u32 s4, {val}'] if scalar else red
    for s_ in first: e(s_)
    e(f's_cbranch_scc0 L_spin{name}'); lab(f'L_back{name}')
    OUTL.extend([f'L_spin{name}:', 's_mov_b32 s4, 0', f'L_sp{name}:',
                 f'buffer_load_dwordx4 v[2:5], off, s[{sF}:{sF+3}], s{sline} sc1', 's_waitcnt vmcnt(0)'] + red +
                [f's_cbranch_scc1 L_back{name}', 's_add_u32 s4, s4, 1', f's_cmp_lt_u32 s4, {1 << opt["spin"]}', f's_cbranch_scc1 L_sp{name}', f's_branch L_back{name}'])

def wo_dma(s, i):
    r = []
    if i == 0:
        d, blk = STG[s]
        r.append(f's_add_u32 s{sWOO}, s{sWH(d)}, {blk*147456}')
    if i & 3 == 0: r.append(f's_add_u32 m0, s{sW9}, {W3SLOT[s % 3] + (i >> 2) * 4096}' if s % 3 < 2 else f's_add_u32 m0, s{sWC}, {(i >> 2) * 4096}')
    return r, f'buffer_load_dwordx4 v{WOA[i]}, s[{sWO}:{sWO+3}], s{sWOO} offen offset:{(i&3)*1024}{POL[opt["wont"]]} lds'
def dma_groups(s):
    gs = [[]]
    for i in range(9):
        pre, ld = wo_dma(s, i)
        gs[-1].extend(pre); gs.append([(ld, ('W3', s))])
    return gs

def attention():
    lab('L_att')
    e(f's_mov_b32 s{sBLK}, 0'); e(f's_mov_b32 s{sEXIT}, 99')
    lab('L_block')
    for qt in range(4): e(f'v_mov_b32 v{NM(qt)}, 0xff800000')
    e(f's_cmp_eq_u32 s{sSAFE}, 0'); e('s_cbranch_scc1 L_nomp')
    maxpass()
    lab('L_nomp')
    iteration(0); iteration(1); iteration(2)
    e(f's_mov_b32 s{sLOOP}, 0')
    e('s_branch L_it3')
    L.append('.p2align 6')
    lab('L_loop')
    iteration(4)
    e(f's_cmp_eq_u32 s{sLOOP}, s{sEXIT}'); e('s_cbranch_scc1 L_tail')
    iteration(5); iteration(6)
    lab('L_it3')
    iteration(7)
    e(f's_add_u32 s{sLOOP}, s{sLOOP}, 1'); e(f's_cmp_lt_u32 s{sLOOP}, 4'); e('s_cbranch_scc1 L_loop')
    iteration(16)
    n = 0
    for t in range(4):
        for qt in range(4):
            for s_ in oconv(qt, t, 32 + (n & 1) * 8, lambda j: PARK((qt*4+t)*4 + j)): e(s_)
            n += 1
    e(f's_mov_b32 s{sBLK}, 1'); e(f's_mov_b32 s{sEXIT}, 3')
    e('s_branch L_block')

def wo_pull_pre(n, va=5):
    return [f's_lshl_b32 s3, s{sB}, 2', f's_add_u32 s3, s3, s{sNQ}', 's_mul_i32 s3, s3, 36864', f's_add_u32 s3, s3, s{sW9}',
            f'v_cmp_gt_u32 vcc, {n}, v0', f'v_lshl_add_u32 v{va}, v0, 7, s3', 'v_bfrev_b32 v3, 1', f'v_cndmask_b32 v{va}, v3, v{va}, vcc']
def wo_piece(k, n, va, dst, pol):
    return [f's_mov_b32 s63, {k*n*128}', (f'buffer_load_dword v{dst}, v{va}, s[{sWO}:{sWO+3}], s63 offen{POL[pol]}', 'g')]

def post(tag, val):
    wait(vm=tag); e(f'v_mov_b32 v2, {val}'); e(f'buffer_store_dword v2, v{FAD}, s[{sF}:{sF+3}], 0 offen sc1'); VM.add('flag')

def tail():
    L.append('.p2align 6')
    lab('L_tail')
    INIT[0] = 1
    VM.q = [10] * 8 + [11] * 8 + [12] * 8
    e('v_readfirstlane_b32 s3, v7'); e(f's_cmp_lg_u32 s{sWV}, 0'); e('s_cselect_b32 s3, 256, s3')
    e('s_cmp_ge_u32 s3, 256'); e('s_cbranch_scc0 L_spinD'); lab('L_backD')
    OUTL.extend(['L_spinD:', 's_mov_b32 s4, 0', 'L_spD:', f'buffer_load_dword v7, off, s[{sD}:{sD+3}], 0 sc1', 's_waitcnt vmcnt(0)',
                 'v_readfirstlane_b32 s3, v7', 's_cmp_ge_u32 s3, 256', 's_cbranch_scc1 L_backD',
                 's_add_u32 s4, s4, 1', f's_cmp_lt_u32 s4, {1 << opt["spin"]}', 's_cbranch_scc1 L_spD', 's_branch L_backD'])
    wait(vm=10, lg0=True); e('s_barrier'); trace()
    e(f'v_mov_b32 v2, {LF1 & ~0xffff}'); e(f'ds_read_b128 v[20:23], v2 offset:{LF1 & 0xffff}')
    st = []
    for t in range(4):
        for u in range(4):
            pre = [f's_lshl_b32 s{sOS}, s{sNQ}, 17'] if t + u == 0 else [f's_add_u32 s{sOS}, s{sOS}, 4096'] if u == 0 else []
            st.append(pre + [(f'buffer_store_dwordx4 {rr(PARK((u*4+t)*4),4)}, v{OA}, s[{sO}:{sO+3}], s{sOS} offen offset:{u*1024}{POL[opt["opol"]]}', ('O1', t >> 1))])
    def stores(u):
        if u == opt['o1st'] and not opt['nost'] & 1: STQ.extend(st)
    stores(25)
    pl = opt['wog'] and opt['wogpos'] == 3
    np_ = opt['wogn']
    pcs = [wo_piece(k, 72 // np_, 1, 5, opt['wogp']) for k in range(np_)] if pl else []
    pc2 = [wo_piece(k, 72 // np_, 1, 5, 0) for k in range(np_)] if pl and opt['wog2'] else []
    h = wo_pull_pre(72 // np_, 1) if pl else []
    k1 = np_ // 3
    if opt['early']:
        for s_ in h: e(s_)
        rest = step(25, dma=('v', sVM(15 % 4), 'V15'), vms=pcs)
        assert not pcs
    else:
        rest = step(25, half=h, fills=[[]] * 5 + sum([[x, []] for x in pcs[:k1]], []))
        assert not h and not rest
    e('s_waitcnt lgkmcnt(0)')
    h = ['v_or3_b32 v2, v20, v21, v22', 'v_or_b32 v2, v2, v23', 's_nop 0', f'v_readfirstlane_b32 s{sF1}, v2']
    gp = []
    stores(26)
    if opt['cpf']:
        cp = code_pf(f'L_op-{NAME}_kernel', 6, 'v5', 6)
        h += cp[:6]; gp = [[], [cp[6], (cp[7], 'g'), cp[8]]]
    rest = step(26, dma=None if opt['early'] else ('v', sVM(15 % 4), 'V15'), fills=([[]] * 4 if opt['early'] else []) + gp + sum([[[], x] for x in pcs[k1:2*k1]], []), half=h)
    assert not h and not rest
    wait(vm=11, lg0=True); e('s_barrier'); trace()
    ad = ['v_mul_u32_u24 v2, 3641, v0', 'v_lshrrev_b32 v2, 16, v2', 'v_mul_u32_u24 v3, 18, v2', 'v_sub_u32 v3, v0, v3',
          f's_mul_i32 s3, s{sNQ}, 288', f's_lshl_b32 s4, s{sW9}, 2', 's_add_u32 s3, s3, s4',
          'v_mul_u32_u24 v2, 1152, v2', 'v_lshl_add_u32 v2, v3, 4, v2', 'v_add_u32 v2, s3, v2', 'v_add_u32 v4, 864, v2']
    ad2 = []
    for i in range(9):
        R, c = divmod(64 * i, 18)
        ad2 += [[f'v_cmp_gt_u32 s[{4+2*(i&1)}:{5+2*(i&1)}], {18 - c}, v3'],
                [f'v_cndmask_b32 v{WOA[i]}, v4, v2, s[{4+2*(i&1)}:{5+2*(i&1)}]', f'v_add_u32 v{WOA[i]}, {R*1152 + c*16 - (i&3)*1024}, v{WOA[i]}']]
    seq = ad2[0] + ad2[2] + ['s_nop 0']
    for i in range(9): seq += ad2[2*i+1] + (ad2[2*i+4] if i + 2 < 9 else [])
    sd = lambda d: [f's_add_u32 s3, s{sNQ}, {d}', 's_and_b32 s3, s3, 3', f's_mul_i32 s{sWH(d)}, s3, 294912', f's_lshl_b32 s{sOH(d)}, s3, 17']
    ad = ad + seq
    stores(27)
    rest = step(27, fills=pcs[2*k1:], both=ad)
    assert not rest
    e('s_waitcnt lgkmcnt(0)')
    ad += [f's_mul_i32 s{sWH(0)}, s{sNQ}, 294912', f's_lshl_b32 s{sOH(0)}, s{sNQ}, 17'] + sd(1)
    ad += [f's_add_u32 s{sWC}, s{sW9}, {135168 - 9216}', f's_cmp_eq_u32 s{sWV}, 0', f's_cselect_b32 s{sWC}, 36864, s{sWC}']
    stores(28)
    rest = step(28, both=ad, fills=pc2)
    assert not rest
    for s_ in ad: e(s_)
    e(f's_andn2_b32 s{sF1}, s{sF1}, s{sSAFE}'); e(f's_cmp_lg_u32 s{sF1}, 0'); e('s_cbranch_scc1 L_redo')
    wait(vm=12, lg0=True); e('s_barrier'); trace()
    d0, d1 = dma_groups(0), dma_groups(1)
    for s_ in d0[0]: e(s_)
    d2 = dma_groups(2)
    d0[-1] += d1[0]; d1[-1] += d2[0]
    vms = d0[1:] + d1[1:] + d2[1:]
    stores(29)
    step(29, vms=vms)
    e('s_waitcnt lgkmcnt(0)'); trace_at(62)
    stores(30)
    step(30, vms=vms)
    wait(vm='V15', lg0=True); e('s_barrier'); trace()
    stores(31)
    sds = sd(2) + sd(3)
    step(31, doqk=False, vms=vms, both=sds)
    e('s_waitcnt lgkmcnt(0)')
    ad = ['v_lshrrev_b32 v2, 2, v0', 'v_mul_u32_u24 v2, 288, v2', 'v_and_b32 v3, 3, v0', f'v_lshl_add_u32 v{WR(0)}, v3, 3, v2',
          f'v_add_u32 v{WR(1)}, {W3SLOT[1]}, v{WR(0)}',
          f's_lshl_b32 s3, s{sNQ}, 2', f's_add_u32 s3, s3, s{sFA}', f'v_bfrev_b32 v{FAD}, 1', f'v_writelane_b32 v{FAD}, s3, 0']
    ad = sds + ad
    step(32, doqk=False, dosm=False, vms=vms, both=ad)
    assert not vms and not ad
    e('s_waitcnt lgkmcnt(0)')
    if opt['postA1'] < 0: post(('O1', 0), 1)
    rest = step(33, doqk=False, dosm=False, dovr=False, spill=False, sumfirst=True, fills=[[]] * 6 + sumcheck(LF2))
    assert not rest
    INIT[0] = 0
    for g_ in STQ:
        for s_ in g_: et(s_)
    STQ.clear()
    wait(vm=('W3', 0), lg0=True); e('s_barrier'); trace()

def tmap(s, T):
    return (T & 1, T >> 1) if s == 7 else divmod(T, 9)
def w3read(s, T, kk, h):
    kp, n = tmap(s, T)
    ks, sl = 2 * kp + kk, s % 3
    off = ks * 9216 + h * 4608 + n * 32
    if sl == 2: sl, off = (0, off + 36864) if ks == 0 else (1, off + 36864 - 9216)
    LG.add(('W3', s, T))
    return f'ds_read_b64_tr_b16 {ar(WF3(s*18+T,kk)+2*h,2)}, v{WR(sl)} offset:{off}'

def oproj():
    lab('L_op')
    LG.q = []
    e(f'v_mov_b32 v3, {LF2 & ~0xffff}'); e(f'ds_read_b128 v[236:239], v3 offset:{LF2 & 0xffff}'); LG.add('f2')
    for T in range(2):
        for kk in range(2):
            for h in range(2): e(w3read(0, T, kk, h))
    cv = []
    n = 0
    o2 = []
    for t in range(4):
        for u in range(4):
            cv += oconv(u, t, 12 if n & 1 else 228 + 4, lambda j: ('v', 160 + (u*4+t)*4 + j), opt['pkmul']); n += 1
            pre = [f's_add_u32 s{sOS}, s{sOH(0)}, {65536 + t*4096}'] if u == 0 else []
            it = (pre, f'buffer_store_dwordx4 {rr(OF(1,t,u),4)}, v{OA}, s[{sO}:{sO+3}], s{sOS} offen offset:{u*1024}{POL[opt["opol"]]}', ('O2', t >> 1))
            if not opt['nost'] & 2: cv.append(lambda it=it: o2.append(it))
    f2 = ['v_or3_b32 v236, v236, v237, v238', 'v_or_b32 v236, v236, v239', 's_nop 0', f'v_readfirstlane_b32 s{sF1}, v236']
    cv = f2 + cv
    late = []
    lastst = -99
    for s in range(8):
        vm = []
        if 1 <= s < 7:
            d, blk = STG[s + 1]
            for ks in range(4):
                for u in range(4):
                    pre = [f's_add_u32 s{sOT(ks)}, s{sOH(d)}, {blk*65536 + ks*4096}'] if u == 0 else []
                    vm.append((pre, f'buffer_load_dwordx4 {rr(OF(s+1,ks,u),4)}, v{OA}, s[{sO}:{sO+3}], s{sOT(ks)} offen offset:{u*1024}{POL[opt["olp"]]}', ('O', s + 1, ks >> 1)))
        wl = [wo_dma(s + 2, i) + (('W3', s + 2),) for i in range(9)] if 1 <= s < 6 else []
        al = vm + wl
        span = 100 if s == 6 else 138
        pos = {2 + (n * span) // max(len(al), 1): it for n, it in enumerate(al)}
        if s in (1, 4):
            pos = {2 + 5 * n: it for n, it in enumerate(vm[:8] + wl)}
            pos.update({90 + 6 * n: it for n, it in enumerate(vm[8:])})
        pos2 = {}
        for g, it in sorted(pos.items()):
            while (g & 7) < 2 or g in pos2: g += 1
            pos2[g] = it
        pos = pos2
        assert not pos or max(pos) < 144, (s, max(pos))
        if s == 5:
            late = [f's_mul_i32 s3, s{sWV}, 5120', f'v_lshl_add_u32 v{RA(0)}, v0, 4, s3', 's_add_u32 s3, s3, 4096', f'v_lshl_add_u32 v{RA(1)}, v0, 3, s3']
            for u in range(1, 4):
                late += [f's_add_u32 s3, s{sKQ}, {u}', 's_and_b32 s3, s3, 3', f's_mul_i32 s3, s3, {RSZ//4}', f's_add_u32 s{sRS(u)}, s3, {(u-1)*20480}']
            late += [f's_mul_i32 s{sRL(1)}, s{sKQ}, {RSZ//4}', f's_add_u32 s{sRL(2)}, s{sRL(1)}, 20480', f's_add_u32 s{sRL(3)}, s{sRL(1)}, 40960']
            late += [f's_mul_i32 s3, s{sB}, 240', f's_lshl_b32 s4, s{sWV}, 6', 's_add_u32 s3, s3, s4', f's_lshl_b32 s4, s{sKQ}, 4', 's_add_u32 s3, s3, s4',
                     's_mul_i32 s3, s3, 2304', f's_mul_i32 s4, s{sP}, 1152', 's_add_u32 s3, s3, s4', f's_mul_i32 s4, s{sNQ}, 288', 's_add_u32 s3, s3, s4',
                     f's_cmp_eq_u32 s{sPAD}, 0', f's_cselect_b32 s3, {OOB}, s3',
                     'v_and_b32 v17, 15, v0', 'v_mul_u32_u24 v17, 2304, v17', 'v_add_u32 v17, s3, v17', 'v_lshrrev_b32 v18, 4, v0',
                     f'v_lshl_add_u32 v{OUTB}, v18, 3, v17', 'v_and_b32 v19, 1, v18', 'v_lshl_add_u32 v17, v19, 5, v17', 'v_lshrrev_b32 v18, 1, v18',
                     f'v_lshl_add_u32 v{OUTA}, v18, 4, v17',
                     f's_lshl_b32 s3, s{sKQ}, 2', f's_add_u32 s3, s3, s{sFC}', f'v_writelane_b32 v{FAD}, s3, 0']
        def send(m, u):
            r = []
            src = []
            for n in range(2 * m, min(2 * m + 2, 9)):
                k, a = ACC3(n, u)
                if k == 'a':
                    t = 224 + 4 * (n - 5)
                    r += [f'v_accvgpr_read_b32 v{t+j}, a{a+j}' for j in range(4)]; a = t
                src.append(a)
            d = src[0]
            for i, a in enumerate(src): r += [f'v_cvt_pk_bf16_f32 v{d+2*i+j}, v{a+2*j}, v{a+2*j+1}' for j in range(2)]
            if m < 4: r.append((f'buffer_store_dwordx4 {vr(d,4)}, v{RA(0)}, s[{sR}:{sR+3}], s{sRS(u)} offen offset:{m*1024} sc1', 'snd'))
            else: r.append((f'buffer_store_dwordx2 {vr(d,2)}, v{RA(1)}, s[{sR}:{sR+3}], s{sRS(u)} offen sc1', 'snd'))
            return r
        for g in range(144):
            T, u, kk = g >> 3, (g >> 1) & 3, g & 1
            kp, n = tmap(s, T)
            if g == 128 and s < 7:
                wait(vm=('W3', s + 1), lg0=True)
                if s == 0:
                    e(f's_andn2_b32 s{sF1}, s{sF1}, s{sSAFE}'); e(f's_cmp_lg_u32 s{sF1}, 0'); e('s_cbranch_scc1 L_redo')
                e('s_barrier'); trace()
                if s in (0, 3): flagcheck('AB'[s // 3] + '1', sFA, 1 + 2 * (s // 3), True); trace_at(58 + s)
            elif s in (1, 4) and g == 88:
                wait(lg0=True); flagcheck('AB'[s // 3] + '2', sFA, 2 + 2 * (s // 3), True)
            elif g & 7 == 0:
                if s == 7 and g == 0: wait(vm=('O', s, 1), lg=('W3', s, T))
                elif s >= 2 and g in (0, 72): wait(vm=('O', s, g // 72), lg=('W3', s, T))
                else: wait(lg=('W3', s, T))
            gg = s * 144 + g
            if gg == opt['postA1']: post(('O1', 0), 1)
            if gg == opt['postA']: post(('O1', 1), 2); trace_at(57)
            if gg == opt['postB1']: assert len(o2) <= 8 and not cv; post(('O2', 0), 3)
            if gg == opt['postB2']: assert not o2; post(('O2', 1), 4)
            if (s, g) == (1, 40): trace_at(59)
            if (s, g) == (1, 80): trace_at(60)
            acc = rr(ACC3(n, u), 4)
            c = '0' if (s == 0 and kp == 0 and kk == 0) else acc
            e(f'{MF} {acc}, {ar(WF3(s*18+T,kk),4)}, {rr(OF(s,2*kp+kk,u),4)}, {c}')
            busy = False
            if (g & 7) < 2:
                T2, s2 = (T + 2) % 18, s + (T + 2) // 18
                if s2 < 8:
                    for h in range(2): e(w3read(s2, T2, g & 1, h))
                    busy = True
            if g + 1 in pos:
                for s_ in pos[g + 1][0]: e(s_)
            if g in pos:
                e(pos[g][1]); VM.add(pos[g][2]); busy = True
            if (s, g) in ((0, 100), (1, 60), (3, 100), (4, 60)):
                e(f's_buffer_load_dwordx4 s[4:7], s[{sF}:{sF+3}], s{sFA} glc')
            if o2 and not busy and gg >= opt['o2pos'] and gg - lastst >= opt['o2sp']:
                it = o2.pop(0)
                for s_ in it[0]: e(s_)
                e(it[1]); VM.add(it[2]); busy = True; lastst = gg
            if s == 7 and g >= 34 and (g & 31) == 2:
                for u2 in (1, 2, 3): late += send((g >> 5) - 1, u2)
            if not busy and g >= 2:
                src = cv if cv else late
                k = 0
                while src and k < ((opt['cvn'] + (g & 1)) // 2 if cv else 2):
                    x = src.pop(0)
                    if isinstance(x, tuple) and k >= 1: src.insert(0, x); break
                    et(x)
                    k += 0 if callable(x) else 2 if isinstance(x, tuple) else 1
            if s == 1 and g == 70: assert not cv, len(cv)
    trace()
    for s_ in late: et(s_)
    e('s_nop 4')
    for u2 in (1, 2, 3):
        for s_ in send(4, u2): et(s_)
    e('v_mov_b32 v2, 1')
    e('s_waitcnt vmcnt(0)')
    e(f'buffer_store_dword v2, v{FAD}, s[{sF}:{sF+3}], 0 offen sc1')
    trace()
    e(f'buffer_load_dwordx4 v[2:5], off, s[{sF}:{sF+3}], s{sFC} sc1'); e('s_waitcnt vmcnt(0)')
    flagcheck('C', sFC, 1)
    trace()
    VM.q = []
    e('s_mov_b32 s4, 0x3f80'); e('s_mov_b32 s5, 0x3f800000')
    IN = lambda m, u: 68 + (m * 3 + u - 1) * 4
    for m in range(5):
        for u in (1, 2, 3):
            if m < 4: e(f'buffer_load_dwordx4 {vr(IN(m,u),4)}, v{RA(0)}, s[{sR}:{sR+3}], s{sRL(u)} offen offset:{m*1024} sc1')
            else: e(f'buffer_load_dwordx2 {vr(IN(m,u),2)}, v{RA(1)}, s[{sR}:{sR+3}], s{sRL(u)} offen sc1')
            VM.add(m)
    for m in range(5):
        wait(vm=m)
        d = 180 + m * 4
        ns = range(2 * m, min(2 * m + 2, 9))
        for u in (1, 2, 3):
            for n in ns:
                a = ACC3(n, 0)[1]
                for r in range(4): e(f'v_dot2c_f32_bf16 v{a+r}, s{4 + (r&1)}, v{IN(m,u) + 2*(n&1) + (r>>1)}')
        e('s_nop 1')
        for n in ns:
            a = ACC3(n, 0)[1]
            for j in range(2): e(f'v_cvt_pk_bf16_f32 v{d+2*(n&1)+j}, v{a+2*j}, v{a+2*j+1}')
        if m < 4:
            e('s_nop 1')
            e(f'v_permlane16_swap_b32 v{d}, v{d+2}'); e(f'v_permlane16_swap_b32 v{d+1}, v{d+3}')
            e(f'buffer_store_dwordx4 {vr(d,4)}, v{OUTA}, s[{sOut}:{sOut+3}], 0 offen offset:{m*64}{POL[opt["outp"]]}'); VM.add('out')
        else:
            e(f'buffer_store_dwordx2 {vr(d,2)}, v{OUTB}, s[{sOut}:{sOut+3}], 0 offen offset:256{POL[opt["outp"]]}')

def descriptor(name, vg=512):
    return f'''.amdhsa_kernel {name}
  .amdhsa_next_free_vgpr {vg}
  .amdhsa_next_free_sgpr 102
  .amdhsa_accum_offset 256
  .amdhsa_group_segment_fixed_size 0
  .amdhsa_kernarg_size 104
  .amdhsa_user_sgpr_count 2
  .amdhsa_user_sgpr_kernarg_segment_ptr 1
  .amdhsa_system_sgpr_workgroup_id_x 1
.end_amdhsa_kernel'''

L.append(f'''; one launch: projection of q, attention (two heads per workgroup), output projection over eight heads, four-way sum
; @launch grid=(256,1,1) block=(256,1,1) lds=163840
.amdgcn_target "amdgcn-amd-amdhsa--gfx950"
.text
.globl {NAME}_kernel
.p2align 8
.type {NAME}_kernel,@function
{NAME}_kernel:''')
setup1()
qproj_start()
vmq = list(VM.q)
setup1b()
lab('L_go')
qproj()
attention()
tail()
oproj()
if opt['trace']:
    trace()
    e('s_lshl_b32 s3, s2, 2'); e(f's_add_u32 s3, s3, s{sWV}'); e('s_lshl_b32 s3, s3, 8')
    e('v_lshl_add_u32 v8, v0, 2, s3')
    e(f'buffer_store_dword v27, v8, s[{sST}:{sST+3}], 0 offen')
e('s_endpgm')
lab('L_redo')
e(f's_mov_b32 s{sSAFE}, 1'); e(f's_mov_b32 s{sFIRST}, 0'); e('s_waitcnt vmcnt(0) lgkmcnt(0)'); e('s_barrier')
e('v_and_b32 v1, 15, v0'); e('v_lshrrev_b32 v2, 4, v0')
staging()
VM.q = []
qproj_start()
assert VM.q == vmq
e('s_branch L_go')
for s_ in OUTL:
    if s_.endswith(':'): L.append(s_)
    else: e(s_)
lab('L_end')
e('s_endpgm')
L.append('.section .rodata,"a"\n.p2align 6\n' + descriptor(NAME + '_kernel'))
open(sys.argv[1], 'w').write('\n'.join(L) + '\n')
```

```python
import sys
NAME = 'concat_heads__mha_block_cached__gqa_block_cached__near_ridge'
opt = dict(xnt=0, wnt=0, trace=0, forcesafe=0, cpf=1, cpfs=5, l2p=3, gpol=1, gpos=100, dsp=7, wog=1, wogp=0, wont=0,
           opol=2, olp=0, only=0, spin=15, perm=0, wogpos=3, wogs=123, wogn=3, wog2=0, pkmul=0, postA=90, postB1=330, postB2=526, atpos=1, o2pos=50, o2sp=23, o1sp=26, o1st=26, vsp=3, early=1, nost=0, outp=0, o1aft=0, cvn=5, postA1=-1, nox=0, dsp6=5, q3=4,
           kpol=1, vpol=1, kvn=0, kvs=0, kvpos=110, kvpol=0, kvl=32, kvgap=64, kvalt=0, kvm=1, kvv=0, kvst=1, dsp0=4)
for a in sys.argv[2:]:
    k, v = a.split('='); assert k in opt, k; opt[k] = int(v)

POL = ['', ' nt', ' sc1', ' sc0 sc1', ' sc1 nt', ' sc0 sc1 nt']
vr = lambda b, n: f'v[{b}:{b+n-1}]'
ar = lambda b, n: f'a[{b}:{b+n-1}]'
def rr(kb, n): return vr(kb[1], n) if kb[0] == 'v' else ar(kb[1], n)
MF = 'v_mfma_f32_16x16x32_bf16'
L = []
INIT = [0]
def e(s):
    if INIT[0] and opt['only'] and (s.startswith('v_') or s.startswith('ds_')) and not s.startswith('v_writelane'): return
    L.append('    ' + s)
def lab(s): L.append(s + ':')
def et(s):
    if isinstance(s, tuple):
        e(s[0])
        if not s[0].startswith('s_nop'): VM.add(s[1])
    elif callable(s): s()
    else: e(s)

class Cnt:
    def __init__(self): self.q = []
    def add(self, tag): self.q.append(tag)
    def need(self, tags):
        if not isinstance(tags, list): tags = [tags]
        idx = [i for i, t in enumerate(self.q) if t in tags]
        if not idx: return None
        n = len(self.q) - 1 - idx[-1]
        self.q = self.q[idx[-1] + 1:]
        return n
VM, LG = Cnt(), Cnt()
def wait(vm=None, lg=None, lg0=False):
    p = []
    if vm is not None:
        n = VM.need(vm)
        if n is not None: p.append(f'vmcnt({min(n,63)})')
    if lg0:
        LG.q = []; p.append('lgkmcnt(0)')
    elif lg is not None:
        n = LG.need(lg)
        if n is not None: p.append(f'lgkmcnt({min(n,15)})')
    if p: e('s_waitcnt ' + ' '.join(p))

WS_O = 0
WS_R = 64 * 524288
RSZ = 4 * 3 * 4 * 5120
WS_F = WS_R + 64 * RSZ
WS_STAMP = 0x4000000
OOB = 0x80000000
LF1, LF2 = 0x27e00, 0x27e10

sK, sV, sX, sW, sO, sWO, sR, sF, sD, sOut, sCP, sST = 8, 12, 16, 20, 24, 28, 64, 68, 72, 76, 80, 84
sKM = lambda i: 32 + i
sVM = lambda i: 36 + i
sP, sHP, sB, sWV = 40, 41, 42, 43
sKO, sVO, sXO, sWQO = 44, 45, 46, 47
sW8 = 48
sBLK, sLOOP, sSAFE, sKQ, sNQ = 49, 50, 51, 52, 53
sFAIL = 54
sPAD, sFIRST, sFA, sFC, sW9, sEXIT, sF1 = 88, 89, 90, 91, 92, 93, 94
sWH = lambda d: 32 + d
sOH = lambda d: 36 + d
sOT = lambda t: 56 + t
sWOO = 60
sOS = 95
sRS = lambda u: 44 + u - 1
sRL = lambda u: 61 + u - 1
KA = lambda ks: 8 + ks
VA = lambda dt: 12 + dt
KD = lambda m: 20 + m
VD = lambda m: 24 + (m & 1)
OA = 26
S = lambda buf, kt, qt: 32 + buf * 32 + (qt * 2 + kt) * 4
P = lambda buf, qt: 96 + buf * 16 + qt * 4
Q = lambda qt, ks: 160 + (qt * 4 + ks) * 4
NM = lambda qt: 224 + qt * 4
def PARK(i):
    if i < 16: return ('v', 240 + i)
    if i < 20: return ('v', 28 + i - 16)
    return ('a', 212 + i - 20)
O = lambda dt, qt: (dt * 4 + qt) * 4
KF = lambda kt, ks: 128 + (kt * 4 + ks) * 4
VF = lambda d4, ks: 160 + (d4 * 2 + ks) * 4
LS = lambda qt: 192 + qt * 4
ONES = 208
RC = lambda qt: 224 + 2 * qt
XF = lambda buf, qt, ks: 128 + buf * 32 + (qt * 2 + ks) * 4
WFR = lambda T, ks: 192 + (T & 3) * 8 + ks * 4
XD = lambda m: 32 + m
WD = lambda m: 40 + m
WA = lambda hi, t: 48 + hi * 8 + t
XA = lambda ks: 6 + ks
def ACC(T, qt):
    if T >= 8: return ('a', ((T - 8) * 4 + qt) * 4)
    i = qt * 4 + (T >> 1)
    return ('v', (96 + 8 * (i >> 1) if i & 1 else 160 + 4 * i) + 4 * (T & 1))
XSLOT = [32768, 0]
WSLOT = [98304, 65536, 131072]
GK = 64
GX, GW, GD = 28, 26, 29
WOA = [6, 7, 20, 21, 22, 23, 24, 25, 1]
WR = lambda sl: 8 + sl
FAD = 11
RA = lambda j: 12 + j
OUTA, OUTB = 15, 16
W3SLOT = [0, 98304]
sWC = 99
WF3 = lambda T, kk: 144 + (T & 3) * 8 + kk * 4
def ACC3(n, u):
    if u < 3: return ('v', 32 + (u * 9 + n) * 4)
    return ('v', 140 + 4 * n) if n < 5 else ('a', 128 + 4 * (n - 5))
STG = [(0, 0), (0, 1), (1, 0), (2, 0), (3, 0), (1, 1), (2, 1), (3, 1)]
def OF(s, ks, u):
    if s == 0: return PARK((u * 4 + ks) * 4)
    if s == 1: return ('v', 160 + (u * 4 + ks) * 4)
    return ('a', (s & 1) * 64 + ks * 16 + u * 4)

def dma_k(m): return f'buffer_load_dwordx4 v{KD(m)}, s[{sK}:{sK+3}], s{sKO} offen offset:{m*1024}{POL[opt["kpol"]]} lds'
def dma_v(m): return f'buffer_load_dwordx4 v{VD(m)}, s[{sV}:{sV+3}], s{sVO} offen offset:{m*1024}{POL[opt["vpol"]]} lds'

def srd(s, lo, hi, off, size):
    if off is None:
        e(f's_mov_b32 s{s}, s{lo}'); e(f's_mov_b32 s{s+1}, s{hi}')
    else:
        e(f's_add_u32 s{s}, s{lo}, {off}'); e(f's_addc_u32 s{s+1}, s{hi}, 0')
    e(f's_mov_b32 s{s+2}, {size}'); e(f's_mov_b32 s{s+3}, 0x20000')

def trace():
    if opt['trace']:
        e('s_memtime s[96:97]' if opt['trace'] == 1 else 's_memrealtime s[96:97]'); e('s_mov_b32 s98, m0'); e('s_mov_b32 m0, s100'); e('s_waitcnt lgkmcnt(0)')
        e('v_writelane_b32 v27, s96, m0'); e('s_mov_b32 m0, s98')
        e('s_add_u32 s100, s100, 1')

def trace_at(lane):
    if opt['trace']:
        e('s_memrealtime s[96:97]'); e('s_waitcnt lgkmcnt(0)'); e(f'v_writelane_b32 v27, s96, {lane}')

def code_srd(s, entry, end):
    e(f's_getpc_b64 s[{s}:{s+1}]')
    lab('L_pc')
    e(f's_sub_u32 s{s}, s{s}, L_pc-{entry}'); e(f's_subb_u32 s{s+1}, s{s+1}, 0')
    e(f's_mov_b32 s{s+2}, {end}-{entry}'); e(f's_mov_b32 s{s+3}, 0x20000')
def code_pf(off, vt, dst=None, st=3):
    return [f's_lshr_b32 s{st}, s2, 3', f's_lshl_b32 s{st}, s{st}, 2', f's_add_u32 s{st}, s{st}, s{sWV}', f's_lshl_b32 s{st}, s{st}, 8', f's_add_u32 s{st}, s{st}, {off}',
            f'v_lshlrev_b32 v{vt}, 7, v0', 's_mov_b64 exec, 3', f'buffer_load_dword {dst or "v%d" % vt}, v{vt}, s[{sCP}:{sCP+3}], s{st} offen', 's_mov_b64 exec, -1']

def setup1():
    e('s_cmp_ge_u32 s2, 256')
    e('s_cbranch_scc1 L_end')
    if opt['perm']:
        e('s_and_b32 s3, s2, 7'); e('s_lshl_b32 s3, s3, 3'); e('s_lshr_b32 s4, s2, 3'); e('s_and_b32 s4, s4, 7'); e('s_or_b32 s3, s3, s4')
        e('s_and_b32 s2, s2, 0xc0'); e('s_or_b32 s2, s2, s3')
    if opt['trace']: e('s_mov_b32 s100, 0'); trace()
    e('s_and_b32 s3, s2, 7'); e('s_lshr_b32 s4, s2, 3')
    e(f's_lshr_b32 s{sP}, s3, 2')
    e(f's_mul_i32 s5, s{sP}, 40')
    e('s_add_u32 s6, s0, s5'); e('s_addc_u32 s7, s1, 0')
    e('s_load_dwordx8 s[56:63], s[6:7], 0')
    e('s_load_dwordx2 s[94:95], s[6:7], 32')
    e('s_load_dwordx4 s[96:99], s[0:1], 80')
    e('s_load_dwordx2 s[50:51], s[0:1], 96')
    e(f's_and_b32 s{sKQ}, s3, 3'); e(f's_and_b32 s{sNQ}, s4, 3'); e(f's_lshr_b32 s{sB}, s4, 2')
    e(f's_lshl_b32 s3, s{sKQ}, 2'); e(f's_add_u32 s{sHP}, s3, s{sNQ}')
    e('v_lshrrev_b32 v1, 6, v0'); e('v_and_b32 v0, 63, v0'); e(f'v_readfirstlane_b32 s{sWV}, v1')
    e('v_and_b32 v1, 15, v0')
    e('v_lshrrev_b32 v2, 4, v0')
    e(f's_lshl_b32 s{sW8}, s{sWV}, 13')
    if opt['cpf']:
        code_srd(sCP, NAME + '_kernel', 'L_end')
        for s_ in code_pf(0, 31): e(s_)
    staging()
    e('s_waitcnt lgkmcnt(0)')
    e(f's_mul_i32 s3, s{sB}, 276480'); srd(sX, 56, 57, 's3', 276480)
    e(f's_lshl_b32 s3, s{sHP}, 9'); srd(sW, 62, 63, 's3', 0)
    e(f's_sub_u32 s{sW+2}, {576*8192}, s3')

def staging():
    e(f's_mul_i32 s3, s{sWV}, {64*1152}')
    e('v_lshrrev_b32 v3, 3, v0'); e('v_mul_u32_u24 v3, 1152, v3'); e('v_add_u32 v3, s3, v3')
    e('v_and_b32 v4, 7, v0'); e('v_xor_b32 v4, v4, v2')
    e(f'v_lshl_add_u32 v{XD(0)}, v4, 4, v3'); e('v_xor_b32 v4, 4, v4'); e(f'v_lshl_add_u32 v{XD(1)}, v4, 4, v3')
    for t in range(3, -1, -1):
        e(f's_add_u32 s3, s{sKQ}, {t}'); e('s_and_b32 s3, s3, 3'); e('s_mul_i32 s3, s3, 18432')
        for o in (1, 0):
            m = 2 * t + o
            e(f's_add_u32 s4, s3, {o*8192}'); e(f'v_add_u32 v{XD(m)}, s4, v{XD(o)}')
    e(f's_lshl_b32 s3, s{sWV}, 17')
    e('v_lshrrev_b32 v3, 5, v0'); e('v_lshl_add_u32 v5, v3, 13, s3')
    e('v_and_b32 v4, 31, v0')
    for m in range(8):
        e(f'v_or_b32 v6, {((2*m)&3) | ((m>>2)<<2)}, v3'); e('v_lshlrev_b32 v6, 1, v6')
        e('v_xor_b32 v6, v6, v4'); e('v_lshl_add_u32 v6, v6, 4, v5')
        e(f'v_add_u32 v{WD(m)}, {m*16384 - (m&3)*1024}, v6')
    if opt['l2p']:
        e(f's_mul_i32 s3, s{sNQ}, 60'); e(f's_mul_i32 s4, s{sWV}, 15'); e('s_add_u32 s3, s3, s4'); e('s_mul_i32 s3, s3, 1152')
        e(f'v_mul_u32_u24 v4, 1152, v0'); e('v_cmp_gt_u32 vcc, 15, v0'); e('v_add_u32 v4, s3, v4')
        e(f'v_add_u32 v5, {(128 - 15*1152) & 0xffffffff}, v4'); e('v_cndmask_b32 v4, v5, v4, vcc')
        e('v_cmp_gt_u32 vcc, 30, v0'); e('v_bfrev_b32 v6, 1')
        e(f's_lshl_b32 s3, s{sB}, 2'); e(f'v_cndmask_b32 v{GX}, v6, v4, vcc')
        e(f's_add_u32 s3, s3, s{sWV}'); e('s_lshl_b32 s3, s3, 14')
        e('v_and_b32 v5, 3, v0'); e('v_lshl_add_u32 v5, v5, 7, s3'); e('v_bfe_u32 v3, v0, 2, 1'); e('v_lshl_add_u32 v5, v3, 13, v5')
        e('v_cmp_gt_u32 vcc, 16, v0'); e('v_lshrrev_b32 v3, 3, v0'); e('v_lshl_add_u32 v5, v3, 19, v5')
        e(f'v_cndmask_b32 v{GW}, v6, v5, vcc')

def setup1b():
    e(f's_lshl_b32 s3, s{sB}, 5'); e(f's_lshl_b32 s4, s{sHP}, 1'); e('s_add_u32 s3, s3, s4'); e('s_lshl_b32 s3, s3, 18')
    srd(sK, 58, 59, 's3', 524288); srd(sV, 60, 61, 's3', 524288)
    e(f's_mul_i32 s3, s{sKQ}, 1179648'); srd(sWO, 94, 95, 's3', 1179648)
    e(f's_lshl_b32 s5, s{sP}, 3'); e(f's_add_u32 s5, s5, s{sB}'); e('s_lshl_b32 s5, s5, 2')
    e(f's_add_u32 s6, s5, s{sKQ}'); e(f's_add_u32 s7, s5, s{sNQ}')
    e('s_lshl_b32 s3, s6, 19'); srd(sO, 50, 51, 's3', 524288)
    e(f's_mul_i32 s3, s7, {RSZ}'); e(f's_add_u32 s3, s3, {WS_R}'); srd(sR, 50, 51, 's3', RSZ)
    srd(sF, 50, 51, WS_F, 16384)
    srd(sOut, 96, 97, None, 8*240*1152*2); srd(sD, 98, 99, None, 256)
    if opt['trace']: srd(sST, 50, 51, WS_STAMP, 0x100000)
    e(f's_lshl_b32 s{sFA}, s6, 7'); e(f's_lshl_b32 s{sFC}, s7, 7'); e(f's_add_u32 s{sFC}, s{sFC}, 8192')
    e(f's_lshl_b32 s3, s{sWV}, 4'); e(f's_add_u32 s{sFA}, s{sFA}, s3'); e(f's_add_u32 s{sFC}, s{sFC}, s3')
    e(f's_sub_u32 s3, 3, s{sKQ}'); e(f's_cmp_eq_u32 s{sWV}, 3'); e(f's_cselect_b32 s{sPAD}, s3, 7')
    e(f's_mul_i32 s{sW9}, s{sWV}, 9216')
    e(f's_mov_b32 s{sSAFE}, {opt["forcesafe"]}'); e(f's_mov_b32 s{sFIRST}, 1')

def setup2():
    e('v_lshrrev_b32 v3, 1, v0'); e('v_and_b32 v3, 7, v3'); e('v_xor_b32 v3, v3, v2')
    e(f'v_lshl_add_u32 v4, v1, 7, s{sW8}')
    e(f'v_lshl_add_u32 v{XA(0)}, v3, 4, v4'); e('v_xor_b32 v3, 4, v3'); e(f'v_lshl_add_u32 v{XA(1)}, v3, 4, v4')
    e('v_bfe_u32 v3, v0, 2, 2')
    e('v_lshl_add_u32 v4, v2, 3, v3'); e('v_lshlrev_b32 v4, 9, v4'); e('v_add_u32 v4, 0x10000, v4')
    e('v_and_b32 v5, 3, v0')
    e('v_lshl_add_u32 v4, v5, 3, v4')
    e('v_and_b32 v5, 1, v2'); e('v_lshl_or_b32 v3, v5, 2, v3')
    for t in range(8):
        e(f'v_xor_b32 v5, {t}, v3'); e(f'v_lshl_add_u32 v{WA(0,t)}, v5, 5, v4')
    for t in range(8): e(f'v_add_u32 v{WA(1,t)}, 0x8000, v{WA(0,t)}')
    e('v_lshrrev_b32 v3, 1, v2'); e('v_and_b32 v4, 1, v2'); e('v_lshl_or_b32 v3, v4, 1, v3')
    for ks in range(4):
        e(f'v_or_b32 v4, {4*ks}, v3'); e('v_xor_b32 v4, v4, v1'); e('v_lshlrev_b32 v4, 4, v4')
        e(f'v_lshl_add_u32 v{KA(ks)}, v1, 8, v4')
    e('v_lshrrev_b32 v4, 2, v0')
    e('v_lshlrev_b32 v5, 8, v4'); e('v_and_b32 v3, 3, v0'); e('v_lshl_add_u32 v5, v3, 3, v5'); e('v_add_u32 v5, 0x10000, v5')
    e('v_and_b32 v4, 7, v4')
    for dt in range(8):
        e(f'v_xor_b32 v3, {dt}, v4'); e(f'v_lshl_add_u32 v{VA(dt)}, v3, 5, v5')
    if opt['kvn']:
        e(f's_and_b32 s4, s{sNQ}, {opt["kvst"]}'); e('s_lshl_b32 s4, s4, 14'); e(f's_mul_i32 s3, s{sWV}, {opt["kvl"]*128}'); e('s_add_u32 s3, s3, s4')
        e(f'v_lshl_add_u32 v{GK}, v0, 7, s3'); e(f'v_cmp_gt_u32 vcc, {opt["kvl"]}, v0'); e('v_bfrev_b32 v3, 1'); e('s_nop 0'); e(f'v_cndmask_b32 v{GK}, v3, v{GK}, vcc')
    e(f's_lshl_b32 s3, s{sWV}, 12')
    e('v_lshl_add_u32 v5, v2, 8, s3')
    for m in range(4):
        e(f'v_or_b32 v3, {4*m}, v2'); e('v_xor_b32 v3, v3, v1'); e(f'v_lshl_add_u32 v{KD(m)}, v3, 4, v5')
    for m in range(2):
        e(f'v_or_b32 v3, {4*m}, v2'); e('v_lshlrev_b32 v3, 1, v3'); e('v_xor_b32 v3, v3, v1'); e(f'v_lshl_add_u32 v{VD(m)}, v3, 4, v5')
    for g in range(4):
        e(f's_add_u32 s{sKM(g)}, s3, {g*16384}')
        e(f's_add_u32 s{sVM(g)}, s3, {65536 + ((g+2)&3)*16384}')

def x_dma(s, m):
    r = []
    if m & 1 == 0: r.append(('s', f's_add_u32 m0, s{sW8}, {XSLOT[s&1] + (m>>1)*2048}'))
    r.append(('g', f'buffer_load_dwordx4 v{XD(m)}, s[{sX}:{sX+3}], s{sXO} offen offset:{(m&1)*1024}{POL[opt["xnt"]]} lds', ('X', s)))
    if m == 7: r.append(('a', f's_add_u32 s{sXO}, s{sXO}, 128'))
    return r
def w_dma(s, m):
    r = []
    if m & 3 == 0: r.append(('s', f's_add_u32 m0, s{sW8}, {WSLOT[s%3] + (m>>2)*4096}'))
    r.append(('g', f'buffer_load_dwordx4 v{WD(m)}, s[{sW}:{sW+3}], s{sWQO} offen offset:{(m&3)*1024}{POL[opt["wnt"]]} lds', ('W', s)))
    if m == 7: r.append(('a', f's_add_u32 s{sWQO}, s{sWQO}, 524288'))
    return r
def kv_dma(kind, t, m):
    r = []
    if m == 0: r.append(('s', f's_mov_b32 m0, s{sKM(t) if kind == "K" else sVM(t)}'))
    r.append(('g', dma_k(m) if kind == 'K' else dma_v(m), (kind, t)))
    if m == 3:
        o = sKO if kind == 'K' else sVO
        r.append(('a', f's_add_u32 s{o}, s{o}, 16384'))
    return r
def emit_dma_plain(items):
    for it in items:
        e(it[1])
        if it[0] == 's': e('s_nop 0')
        if it[0] == 'g': VM.add(it[2])
def wread(s, T, ks, h):
    sl = WSLOT[s % 3]
    hi = 0 if sl == 65536 else 1
    base = sl - 65536 - hi * 32768
    off = base + ks * 16384 + h * 2048 + (T >> 3) * 256
    assert off < 65536
    LG.add(('W', s, T))
    return f'ds_read_b64_tr_b16 {ar(WFR(T,ks)+2*h,2)}, v{WA(hi,T&7)} offset:{off}'
def xread(s, qt, ks):
    off = XSLOT[s & 1] + qt * 2048
    LG.add(('X', s))
    return f'ds_read_b128 {ar(XF(s&1,qt,ks),4)}, v{XA(ks)} offset:{off}'
def gather(st):
    VM.add('g'); VM.add('g')
    return [f's_mov_b32 s3, {st*128}', f's_mov_b32 s4, {st*524288}',
            f'buffer_load_dword v{GD}, v{GX}, s[{sX}:{sX+3}], s3 offen{POL[opt["gpol"]]}',
            f'buffer_load_dword v{GD}, v{GW}, s[{sW}:{sW+3}], s4 offen{POL[opt["gpol"]]}']

KVQ = [0]
def kvpull():
    ns = 7 - opt['kvs']
    if opt['kvalt']: ns = (ns + 1) // 2
    n, q, per = ns * opt['kvn'] * opt['kvm'], KVQ[0], 32 // opt['kvl']
    KVQ[0] += 1
    nt_ = -(-n // per)
    off = (3 + (q // per) * (29 - opt['kvst']) // nt_) * 16384 + (q % per) * opt['kvl'] * 512
    srd_ = sV if (opt['kvv'] == 1 or (opt['kvv'] == 2 and (q // per) & 1)) else sK
    e(f's_mov_b32 s3, {off}')
    e(f'buffer_load_dword v{GD}, v{GK}, s[{srd_}:{srd_+3}], s3 offen{POL[opt["kvpol"]]}'); VM.add('g')

def count_in():
    wait(vm='clr')
    e(f's_cmp_eq_u32 s{sWV}, 0'); e(f's_cselect_b32 s3, 0, {OOB}')
    e('v_bfrev_b32 v30, 1'); e('v_writelane_b32 v30, s3, 0'); e(f'v_mov_b32 v3, s{sFIRST}')
    e(f'buffer_atomic_add v3, v30, s[{sD}:{sD+3}], 0 offen sc1'); VM.add('cnt')

def qproj_start():
    e(f's_mov_b32 s{sXO}, 0'); e(f's_mov_b32 s{sWQO}, 0')
    if opt['l2p'] & 2:
        for s_ in gather(0): e(s_)
    for m in range(8): emit_dma_plain(x_dma(0, m))
    for m in range(8): emit_dma_plain(w_dma(0, m))

def qproj():
    e(f's_mov_b32 s{sKO}, 0'); e(f's_mov_b32 s{sVO}, 0')
    setup2()
    wait(vm=('X', 0))
    for qt in range(4):
        for ks in range(2): e(xread(0, qt, ks))
    wait(vm=('W', 0)); e('s_barrier')
    trace()
    for T in range(2):
        for ks in range(2):
            for h in range(2): e(wread(0, T, ks, h))
    def mfma(s, T, qt, ks):
        acc = rr(ACC(T, qt), 4)
        e(f'{MF} {acc}, {ar(WFR(T,ks),4)}, {ar(XF(s&1,qt,ks),4)}, {"0" if (s == 0 and ks == 0) else acc}')
    def dma_at(dpos, g):
        for d, kind in ((1, 's'), (0, 'g'), (-1, 'a')):
            for it in dpos.get(g + d, []):
                if it[0] == kind:
                    e(it[1])
                    if kind == 'g': VM.add(it[2])
    for s in range(7):
        dpos = {}
        if s < 7:
            dm = [x_dma(s + 2, m) for m in range(8)] + [w_dma(s + 2, m) for m in range(8)]
            if opt['nox'] & 1: dm = [[] for m in range(8)] + dm[8:]
        if s == 0:
            dm = [x_dma(1, m) for m in range(8)] + [w_dma(1, m) for m in range(8)] + dm
            for n, it in enumerate(dm): dpos[(opt['dsp0'] * n // 2) * 2 + 2] = it
            xpos = {66 + 6 * n: n for n in range(8)}
        else:
            for n, it in enumerate(dm): dpos[(n * (opt['dsp6'] if s == 6 else opt['dsp']) // 2) * 2 + 4] = it
            xpos = {8 * (6 + n) + 2: n for n in range(8)} if s < 8 else {}
        for g in range(128):
            T, qt, ks = g >> 3, (g >> 1) & 3, g & 1
            if g == 112 and s < 8:
                wait(vm=('W', s + 1), lg0=True); e('s_barrier'); trace()
            elif g & 7 == 0:
                if g == 0: wait(lg=('X', s))
                wait(lg=('W', s, T))
            if g in xpos and xpos[g] == 0: wait(vm=('X', s + 1))
            mfma(s, T, qt, ks)
            if (g & 7) < 2:
                T2, s2 = (T + 2) & 15, s + ((T + 2) >> 4)
                if s2 < 9:
                    for h in range(2): e(wread(s2, T2, g & 1, h))
            if g in xpos and not (opt['nox'] & 2 and s): e(xread(s + 1, xpos[g] >> 1, xpos[g] & 1))
            if opt['cpf'] and s == opt['cpfs'] and g == 117:
                for s_ in code_pf(f'L_att-{NAME}_kernel', 31): e(s_)
                VM.add('cpf')
            if opt['l2p'] and ((s == 0 and g == 3) or (g == opt['gpos'] + 1 and s in (1, 3, 5))):
                for s_ in gather(2 if s == 0 else s + 3): e(s_)
            if g == 119 and s == 1:
                e(f's_lshl_b32 s3, s{sNQ}, 2'); e(f's_add_u32 s3, s3, s{sFA}'); e(f's_lshl_b32 s4, s{sKQ}, 2'); e(f's_add_u32 s4, s4, s{sFC}')
                e(f's_sub_u32 s4, s4, 64'); e(f's_cmp_eq_u32 s{sWV}, 0'); e(f's_cselect_b32 s5, s{sFIRST}, 0'); e('s_lshl_b32 s5, s5, 3')
                e('v_mov_b32 v3, s4'); e('v_cmp_gt_u32 vcc, 4, v0'); e('v_mov_b32 v30, s3'); e('v_bfrev_b32 v4, 1')
                e('v_cndmask_b32 v30, v3, v30, vcc'); e('v_cmp_gt_u32 vcc, s5, v0'); e('v_lshl_add_u32 v30, v0, 4, v30'); e('v_mov_b32 v3, 0')
                e('v_cndmask_b32 v30, v4, v30, vcc')
                e(f'buffer_store_dword v3, v30, s[{sF}:{sF+3}], 0 offen sc1'); VM.add('clr')
            if opt['kvn'] and s >= opt['kvs'] and g - 1 in [opt['kvpos'] + r * opt['kvgap'] for r in range(opt['kvn'])]:
                if not (opt['kvalt'] and (s - opt['kvs']) & 1):
                    for _ in range(opt['kvm']): kvpull()
            if g == 119 and s == 3 and opt['atpos'] == 0: count_in()
            if g == opt['wogs'] and opt['wogpos'] == 2 and opt['wog']:
                if s == 0:
                    for s_ in wo_pull_pre(18 if opt['wog2'] else 12): e(s_)
                if opt['wog2']:
                    if s < 4:
                        for s_ in wo_piece(s, 18, 5, GD, opt['wogp']): et(s_)
                    if 2 <= s < 6:
                        for s_ in wo_piece(s - 2, 18, 5, GD, 0): et(s_)
                elif s < 6:
                    for s_ in wo_piece(s, 12, 5, GD, opt['wogp']): et(s_)
            dma_at(dpos, g)
    e('s_mov_b32 s58, 0x3e0293ee'); e('s_mov_b32 s59, 0x3e0293ee')
    seq = [(7, T) for T in range(8)] + [(8, T) for T in range(8)] + [(7, T) for T in range(8, 16)] + [(8, T) for T in range(8, 16)]
    dm = [kv_dma(k, t, m) for k, t in (('K', 0), ('K', 1), ('V', 0), ('K', 2), ('V', 1)) for m in range(4)]
    dpos = {4 + 6 * n: it for n, it in enumerate(dm)}
    xpos = {g: n for g, n in zip([11, 15, 19, 23, 27, 31, 35, 39], range(8))}
    cv, pend = [], []
    for qt in range(4):
        for t in range(4):
            i = qt * 4 + t
            a_, d = ACC(2 * t, qt)[1], 160 + 4 * i
            cv += [f'v_mul_f32 v{a_+j}, s58, v{a_+j}' for j in range(8)] + pend
            cv += [f'v_cvt_pk_bf16_f32 v{d+j}, v{a_+2*j}, v{a_+2*j+1}' for j in range(4)]
            pend = [f'v_permlane16_swap_b32 v{d}, v{d+2}', f'v_permlane16_swap_b32 v{d+1}, v{d+3}']
    for g in range(256):
        p_, qt, ks = g >> 3, (g >> 1) & 3, g & 1
        s, T = seq[p_]
        if g == 48:
            wait(vm=('W', 8), lg0=True); e('s_barrier'); trace()
        elif g & 7 == 0:
            if g == 0: wait(lg=('X', 7))
            wait(lg=('W', s, T))
        if g == 11: wait(vm=('X', 8))
        mfma(s, T, qt, ks)
        busy = False
        if (g & 7) < 2 and p_ + 2 < 32:
            for h in range(2): e(wread(*seq[p_ + 2], g & 1, h))
            busy = True
        if g in xpos: e(xread(8, xpos[g] >> 1, xpos[g] & 1))
        dma_at(dpos, g)
        if g >= 130 and not busy:
            for _ in range(2 + (g % opt['q3'] == 0)):
                if cv: e(cv.pop(0))
    for s_ in cv: e(s_)
    trace()
    if opt['atpos'] == 1: count_in()
    for s_ in pend: e(s_)
    grp = []
    for t in range(4):
        for qt in range(4):
            n = len(grp)
            tb = 64 + (n & 1) * 8
            ds = [PARK((qt*4+t)*4 + j) for j in range(4)]
            tmp = [d[1] if d[0] == 'v' else 80 + (n & 1) * 4 + j for j, d in enumerate(ds)]
            rd = [f'v_accvgpr_read_b32 v{tb+4*o+r}, a{ACC(8+2*t+o,qt)[1]+r}' for o in range(2) for r in range(4)]
            ml = [f'v_pk_mul_f32 {vr(tb+2*j,2)}, {vr(tb+2*j,2)}, s[58:59]' for j in range(4)]
            ct = [f'v_cvt_pk_bf16_f32 v{tmp[j]}, v{tb+2*j}, v{tb+2*j+1}' for j in (0, 2, 1, 3)]
            sw = [f'v_permlane16_swap_b32 v{tmp[0]}, v{tmp[2]}', f'v_permlane16_swap_b32 v{tmp[1]}, v{tmp[3]}']
            wr = [f'v_accvgpr_write_b32 a{d[1]}, v{tmp[j]}' for j, d in enumerate(ds) if d[0] == 'a']
            grp.append((rd, ml, ct, sw, wr))
    for s_ in grp[0][0]: e(s_)
    for n in range(16):
        rd, ml, ct, sw, wr = grp[n]
        nx = grp[n + 1][0] if n < 15 else ['', '', 's_nop 1'] + [''] * 5
        pw = grp[n - 1][4] if n else []
        for s_ in ml + pw + nx[:2] + ct + nx[2:6] + sw + nx[6:]:
            if s_: e(s_)
    e('s_nop 1')
    for s_ in grp[15][4]: e(s_)
    e(f's_lshl_b32 s3, s{sWV}, 14'); e(f'v_lshl_add_u32 v{OA}, v0, 4, s3')
    e('v_mov_b32 v4, 0x3f803f80')
    for r in range(4): e(f'v_accvgpr_write_b32 a{ONES+r}, v4')

def qk(buf, kt, qt, ks, c0=False):
    c = ('0' if c0 else vr(NM(qt), 4)) if ks == 0 else vr(S(buf, kt, qt), 4)
    return f'{MF} {vr(S(buf,kt,qt),4)}, {ar(KF(kt,ks),4)}, {vr(Q(qt,ks),4)}, {c}'
def pv(pb, dt, qt, ks, first):
    c = '0' if (first and ks == 0) else ar(O(dt, qt), 4)
    return f'{MF} {ar(O(dt,qt),4)}, {ar(VF(dt&3,ks),4)}, {vr(P(pb+ks,qt),4)}, {c}'
def sm(pb, qt, ks, first):
    c = '0' if (first and ks == 0) else ar(LS(qt), 4)
    return f'{MF} {ar(LS(qt),4)}, {ar(ONES,4)}, {vr(P(pb+ks,qt),4)}, {c}'
def kread(unit, kt, ks): return f'ds_read_b128 {ar(KF(kt,ks),4)}, v{KA(ks)} offset:{(unit % 8) * 8192 + kt * 4096}'
def vread(tile, dt, ks, h): return f'ds_read_b64_tr_b16 {ar(VF(dt&3,ks)+2*h,2)}, v{VA(dt)} offset:{((tile + 2) % 4) * 16384 + (32*ks + 16*h) * 256}'
def xop(b, n):
    qt, kt, r = n >> 3, (n >> 2) & 1, n & 3
    return f'v_exp_f32 v{S(b,kt,qt)+r}, v{S(b,kt,qt)+r}'
def cop(u, n):
    qt, kt, r = n >> 2, (n >> 1) & 1, (n & 1) * 2
    return f'v_cvt_pk_bf16_f32 v{P(u&3,qt)+(n&3)}, v{S(u&1,kt,qt)+r}, v{S(u&1,kt,qt)+r+1}'

PLAN_A = ['dC', 'x', 'd', 'x', 'c', 'x', 'dd', 'g', 'x', 'c', 'x', 'dd', 'g', 'x', 'c', 'x', 'dd', 'g', 'x', 'c', 'x', '', 'g',
          'x', 'c', 'x', 'x', 'c', 'x', 'x', 'c', 'x', 'x', 'c', 'x', 'x']
PLAN_B = ['tc', 'x', 'tt', 'x', 'tc', 'x', 'tt', 'x', 'tc', 'x', 'tt', 'x', 'tc', 'x', 'tt', 'x', 'tc', 'x', 'tt', 'x', 'tc', 'x', 'x', 'c',
          'x', 'x', '', '', '', '', '', '']

STQ, GS = [], [0, -99]
def step(u, dopv=True, doqk=True, dosm=True, dovr=True, dma=None, first=False, spill=True, fills=None, sumfirst=False, half=None, both=None, vms=None):
    b = u & 1; hh = u & 1; j = u >> 1
    pb = (2 * (j - 1)) & 3
    mf = []
    for d4 in range(4):
        for qt in range(4):
            for ks in range(2): mf.append(pv(pb, 4*hh + d4, qt, ks, first) if dopv else None)
    for qt in (2*hh, 2*hh+1):
        for ks in range(2): mf.append(sm(pb, qt, ks, first) if dopv else None)
    if sumfirst: mf = mf[32:] + mf[:32]
    for kt in range(2):
        for qt in range(4):
            for ks in range(4): mf.append(qk(b ^ 1, kt, qt, ks) if doqk else None)
    plan = PLAN_A + PLAN_B
    cntx = ''.join(plan)
    assert len(PLAN_A) == 36 and len(PLAN_B) == 32
    assert [cntx.count(z) for z in 'xcdtg'] == [32, 15, 8, 16, 4]
    nx = nc = nd = nt_ = ng = 0
    vtile = (u + 1) // 2 - 1; vh = (u + 1) & 1
    korder = [(kt, ks) for kt in range(2) for ks in range(4)]
    vorder = [(d4, ks, h) for d4 in range(4) for ks in range(2) for h in range(2)]
    fills = list(fills or [])
    lastx = False
    lastv = -9
    for g in range(68):
        if g == 36 and doqk: e('s_waitcnt lgkmcnt(0)')
        if mf[g]: e(mf[g]); lastx = False
        nxt = plan[g + 1] if g + 1 < 68 else ''
        if 'g' in nxt and ng == 0 and dma: e(f's_mov_b32 m0, s{dma[1]}'); lastx = False
        used = 0
        for z in plan[g]:
            if z == 'x':
                if dosm: e(xop(b, nx)); lastx = True; used += 1
                nx += 1
            elif z == 'c':
                assert nx >= 2 * nc + 2, (g, nx, nc)
                if dosm:
                    if lastx: e('s_nop 0')
                    e(cop(u, nc)); lastx = False; used += 1
                nc += 1
            elif z == 'C':
                if spill: e(cop(u - 1, 15)); lastx = False; used += 1
            elif z == 'd':
                if doqk: e(kread(u + 1, *korder[nd])); lastx = False; used += 1
                nd += 1
            elif z == 't':
                if dovr: e(vread(vtile, 4 * vh + vorder[nt_][0], vorder[nt_][1], vorder[nt_][2])); lastx = False; used += 1
                nt_ += 1
            elif z == 'g':
                if dma:
                    if not mf[g] and ng == 0: e('s_nop 0')
                    e(dma_k(ng) if dma[0] == 'k' else dma_v(ng)); lastx = False; used += 1
                    if len(dma) > 2: VM.add(dma[2])
                ng += 1
        took = False
        if mf[g] and fills and not used and g >= 1:
            took = True
            for s_ in fills.pop(0): et(s_)
            lastx = False
        free = 0 if not mf[g] or g < 1 else 2 if not used and not took else 1 if used == 1 and plan[g] in ('c', 'd') else 0
        if mf[g]: GS[0] += 1
        if free and STQ and GS[0] - GS[1] >= opt['o1sp'] and not (free == 1 and half) and not (vms and opt['o1aft']):
            for s_ in STQ.pop(0): et(s_)
            GS[1] = GS[0]; lastv = g; free = 0; lastx = False
        if free and vms and g - lastv >= opt['vsp']:
            for s_ in vms.pop(0): et(s_)
            lastv = g; free = 0; lastx = False
        if free == 1 and half: e(half.pop(0)); lastx = False; free = 0
        while free and both: et(both.pop(0)); lastx = False; free -= 1
        if g == 62 and dma:
            r = sKO if dma[0] == 'k' else sVO
            e(f's_add_u32 s{r}, s{r}, 16384')
    return fills

def first_step(dma):
    for kt in range(2):
        for ks in range(4): e(kread(0, kt, ks))
    e(f's_mov_b32 m0, s{dma[1]}'); e('s_nop 0')
    for m in range(4): e(dma_k(m))
    e(f's_add_u32 s{sKO}, s{sKO}, 16384')
    e('s_mov_b32 s3, 0x7149f2ca')
    for qt in range(4):
        e(f's_cmp_eq_u32 s{sPAD}, {qt}'); e(f's_cselect_b32 s{56+qt}, s3, 0xff800000')
    e('s_waitcnt lgkmcnt(0)')
    def mx(qt):
        a, b2 = S(0, 0, qt), S(0, 1, qt)
        t = 1 + qt
        return [f'v_max3_f32 v{t}, v{a}, v{a+1}, v{a+2}', f'v_max3_f32 v{t}, v{t}, v{a+3}, v{b2}',
                f'v_max3_f32 v{t}, v{t}, v{b2+1}, v{b2+2}', f'v_max3_f32 v{t}, v{t}, v{b2+3}, v{NM(qt)}']
    for qt in range(4):
        pend = mx(qt - 2) if qt >= 2 else []
        for kt in range(2):
            for ks in range(4):
                e(qk(0, kt, qt, ks, c0=True))
                if pend and ks & 1: e(pend.pop(0))
    for s_ in mx(2): e(s_)
    e('s_nop 3')
    for s_ in mx(3): e(s_)
    for sw in ('v_permlane16_swap_b32', 'v_permlane32_swap_b32'):
        for qt in range(4): e(f'v_mov_b32 v{NM(qt)}, v{1+qt}')
        e('s_nop 0')
        for qt in range(4): e(f'{sw} v{1+qt}, v{NM(qt)}')
        e('s_nop 0')
        if sw == 'v_permlane16_swap_b32':
            for qt in range(4): e(f'v_max_f32 v{1+qt}, v{1+qt}, v{NM(qt)}')
        else:
            for qt in range(4): e(f'v_max3_f32 v{1+qt}, v{1+qt}, v{NM(qt)}, s{56+qt}')
    for qt in range(4):
        for r in range(4): e(f'v_mul_f32 v{NM(qt)+r}, -1.0, v{1+qt}')
    for qt in range(4):
        for kt in range(2):
            for r in range(4): e(f'v_add_f32 v{S(0,kt,qt)+r}, v{S(0,kt,qt)+r}, v{NM(qt)}')

def pairs(l): return [l[i:i+2] for i in range(0, len(l), 2)]

def iteration(i):
    INIT[0] = 1
    e('s_waitcnt vmcnt(16) lgkmcnt(0)')
    e('s_barrier')
    trace()
    dk, dv = ('k', sKM((i + 3) % 4)), ('v', sVM((i + 2) % 4))
    if i == 0:
        first_step(dk)
        step(0, dopv=False, dovr=False, dma=dv, spill=False)
    elif i == 1:
        step(1, dopv=False, dma=dk)
        e('s_waitcnt lgkmcnt(0)')
        step(2, dma=dv, first=True)
    elif i == 2:
        step(3, dma=dk, first=True)
        e('s_waitcnt lgkmcnt(0)')
        step(4, dma=dv)
    elif i == 16:
        mv = []
        for n in range(64):
            k, r = PARK(n)
            mv.append(f'v_mov_b32 v{160+n}, v{r}' if k == 'v' else f'v_accvgpr_read_b32 v{160+n}, a{r}')
        cn = [[f's_cmp_eq_u32 s{sWV}, 0', f's_cselect_b32 s3, 0, {OOB}'], ['v_mov_b32 v7, s3'], [f'buffer_load_dword v7, v7, s[{sD}:{sD+3}], 0 offen sc1']]
        r = step(31, doqk=False, fills=cn)
        assert not r
        e('s_waitcnt lgkmcnt(0)')
        r = step(32, doqk=False, dosm=False, fills=pairs(mv))
        assert not r
        e('s_waitcnt lgkmcnt(0)')
        r = step(33, doqk=False, dosm=False, dovr=False, spill=False, sumfirst=True, fills=[[]] * 6 + sumcheck(LF1))
        assert not r
    else:
        step(2*i - 1, dma=dk)
        e('s_waitcnt lgkmcnt(0)')
        step(2*i, dma=dv)
    INIT[0] = 0

def sumcheck(lf):
    sor = [] if opt['only'] else [f's_or_b64 s[{sFAIL}:{sFAIL+1}], s[{sFAIL}:{sFAIL+1}], vcc']
    r = [['s_mov_b32 s60, 0x4e800000', f's_mov_b64 s[{sFAIL}:{sFAIL+1}], 0']]
    for qt in range(4):
        r.append([f'v_accvgpr_read_b32 v{RC(qt)}, a{LS(qt)}', f'v_cmp_ngt_f32 vcc, s60, v{RC(qt)}'])
        r.append(sor + [f'v_max_f32 v{RC(qt)}, 0x00800000, v{RC(qt)}'])
    for qt in range(4): r.append([f'v_rcp_f32 v{RC(qt)}, v{RC(qt)}'])
    r.append([f's_cmp_lg_u64 s[{sFAIL}:{sFAIL+1}], 0', 's_cselect_b32 s60, 1, 0'])
    r.append([f's_lshl_b32 s61, s{sWV}, 2', f's_add_u32 s61, s61, {lf & ~0xffff}'])
    r.append([f'v_mov_b32 v{RC(0)+1}, s60', f'v_mov_b32 v{RC(1)+1}, s61'])
    r.append([f'ds_write_b32 v{RC(1)+1}, v{RC(0)+1} offset:{lf & 0xffff}'])
    return r

def oconv(qt, t, tb, dst, pk=1):
    r = [f'v_accvgpr_read_b32 v{tb+j}, a{O(2*t+(j>>2),qt)+(j&3)}' for j in range(8)]
    if pk: r += [f'v_pk_mul_f32 {vr(tb+2*j,2)}, {vr(tb+2*j,2)}, {vr(RC(qt),2)} op_sel_hi:[1,0]' for j in range(4)]
    else: r += [f'v_mul_f32 v{tb+j}, v{tb+j}, v{RC(qt)}' for j in range(8)]
    for j in range(4):
        d = dst(j)
        r.append(f'v_cvt_pk_bf16_f32 v{d[1] if d[0] == "v" else tb+j}, v{tb+2*j}, v{tb+2*j+1}')
    for j in range(4):
        d = dst(j)
        if d[0] == 'a': r.append(f'v_accvgpr_write_b32 a{d[1]}, v{tb+j}')
    return r

def maxpass():
    e('v_and_b32 v1, 15, v0'); e('v_lshlrev_b32 v1, 4, v1'); e(f'v_xor_b32 v5, v{KA(0)}, v1')
    e(f's_lshl_b32 s56, s{sBLK}, 18'); e('s_mov_b32 s58, 0')
    lab('L_mp')
    e('s_add_u32 s57, s56, 4096')
    for kt in range(2):
        for ks in range(4):
            e(f'buffer_load_dwordx4 {ar(KF(kt,ks),4)}, v5, s[{sK}:{sK+3}], s{56+kt} offen offset:{ks*64}')
    e('s_waitcnt vmcnt(0)')
    for qt in range(4):
        for kt in range(2):
            for ks in range(4): e(qk(0, kt, qt, ks, c0=True))
    e('s_nop 7')
    for qt in range(4):
        a, b2 = S(0, 0, qt), S(0, 1, qt)
        t = NM(qt)
        e(f'v_max3_f32 v{t}, v{t}, v{a}, v{a+1}'); e(f'v_max3_f32 v{t}, v{t}, v{a+2}, v{a+3}')
        e(f'v_max3_f32 v{t}, v{t}, v{b2}, v{b2+1}'); e(f'v_max3_f32 v{t}, v{t}, v{b2+2}, v{b2+3}')
    e('s_add_u32 s56, s56, 8192'); e('s_add_u32 s58, s58, 1'); e('s_cmp_lt_u32 s58, 32'); e('s_cbranch_scc1 L_mp')

OUTL = []
def flagcheck(name, sline, val, scalar=False):
    red = ['v_min3_u32 v2, v2, v3, v4', 'v_min_u32 v2, v2, v5', 's_nop 0', 'v_readfirstlane_b32 s3, v2', f's_cmp_ge_u32 s3, {val}']
    first = ['s_min_u32 s4, s4, s5', 's_min_u32 s6, s6, s7', 's_min_u32 s4, s4, s6', f's_cmp_ge_u32 s4, {val}'] if scalar else red
    for s_ in first: e(s_)
    e(f's_cbranch_scc0 L_spin{name}'); lab(f'L_back{name}')
    OUTL.extend([f'L_spin{name}:', 's_mov_b32 s4, 0', f'L_sp{name}:',
                 f'buffer_load_dwordx4 v[2:5], off, s[{sF}:{sF+3}], s{sline} sc1', 's_waitcnt vmcnt(0)'] + red +
                [f's_cbranch_scc1 L_back{name}', 's_add_u32 s4, s4, 1', f's_cmp_lt_u32 s4, {1 << opt["spin"]}', f's_cbranch_scc1 L_sp{name}', f's_branch L_back{name}'])

def wo_dma(s, i):
    r = []
    if i == 0:
        d, blk = STG[s]
        r.append(f's_add_u32 s{sWOO}, s{sWH(d)}, {blk*147456}')
    if i & 3 == 0: r.append(f's_add_u32 m0, s{sW9}, {W3SLOT[s % 3] + (i >> 2) * 4096}' if s % 3 < 2 else f's_add_u32 m0, s{sWC}, {(i >> 2) * 4096}')
    return r, f'buffer_load_dwordx4 v{WOA[i]}, s[{sWO}:{sWO+3}], s{sWOO} offen offset:{(i&3)*1024}{POL[opt["wont"]]} lds'
def dma_groups(s):
    gs = [[]]
    for i in range(9):
        pre, ld = wo_dma(s, i)
        gs[-1].extend(pre); gs.append([(ld, ('W3', s))])
    return gs

def attention():
    lab('L_att')
    e(f's_mov_b32 s{sBLK}, 0'); e(f's_mov_b32 s{sEXIT}, 99')
    lab('L_block')
    for qt in range(4): e(f'v_mov_b32 v{NM(qt)}, 0xff800000')
    e(f's_cmp_eq_u32 s{sSAFE}, 0'); e('s_cbranch_scc1 L_nomp')
    maxpass()
    lab('L_nomp')
    iteration(0); iteration(1); iteration(2)
    e(f's_mov_b32 s{sLOOP}, 0')
    e('s_branch L_it3')
    L.append('.p2align 6')
    lab('L_loop')
    iteration(4)
    e(f's_cmp_eq_u32 s{sLOOP}, s{sEXIT}'); e('s_cbranch_scc1 L_tail')
    iteration(5); iteration(6)
    lab('L_it3')
    iteration(7)
    e(f's_add_u32 s{sLOOP}, s{sLOOP}, 1'); e(f's_cmp_lt_u32 s{sLOOP}, 4'); e('s_cbranch_scc1 L_loop')
    iteration(16)
    n = 0
    for t in range(4):
        for qt in range(4):
            for s_ in oconv(qt, t, 32 + (n & 1) * 8, lambda j: PARK((qt*4+t)*4 + j)): e(s_)
            n += 1
    e(f's_mov_b32 s{sBLK}, 1'); e(f's_mov_b32 s{sEXIT}, 3')
    e('s_branch L_block')

def wo_pull_pre(n, va=5):
    return [f's_lshl_b32 s3, s{sB}, 2', f's_add_u32 s3, s3, s{sNQ}', 's_mul_i32 s3, s3, 36864', f's_add_u32 s3, s3, s{sW9}',
            f'v_cmp_gt_u32 vcc, {n}, v0', f'v_lshl_add_u32 v{va}, v0, 7, s3', 'v_bfrev_b32 v3, 1', f'v_cndmask_b32 v{va}, v3, v{va}, vcc']
def wo_piece(k, n, va, dst, pol):
    return [f's_mov_b32 s63, {k*n*128}', (f'buffer_load_dword v{dst}, v{va}, s[{sWO}:{sWO+3}], s63 offen{POL[pol]}', 'g')]

def post(tag, val):
    wait(vm=tag); e(f'v_mov_b32 v2, {val}'); e(f'buffer_store_dword v2, v{FAD}, s[{sF}:{sF+3}], 0 offen sc1'); VM.add('flag')

def tail():
    L.append('.p2align 6')
    lab('L_tail')
    INIT[0] = 1
    VM.q = [10] * 8 + [11] * 8 + [12] * 8
    e('v_readfirstlane_b32 s3, v7'); e(f's_cmp_lg_u32 s{sWV}, 0'); e('s_cselect_b32 s3, 256, s3')
    e('s_cmp_ge_u32 s3, 256'); e('s_cbranch_scc0 L_spinD'); lab('L_backD')
    OUTL.extend(['L_spinD:', 's_mov_b32 s4, 0', 'L_spD:', f'buffer_load_dword v7, off, s[{sD}:{sD+3}], 0 sc1', 's_waitcnt vmcnt(0)',
                 'v_readfirstlane_b32 s3, v7', 's_cmp_ge_u32 s3, 256', 's_cbranch_scc1 L_backD',
                 's_add_u32 s4, s4, 1', f's_cmp_lt_u32 s4, {1 << opt["spin"]}', 's_cbranch_scc1 L_spD', 's_branch L_backD'])
    wait(vm=10, lg0=True); e('s_barrier'); trace()
    e(f'v_mov_b32 v2, {LF1 & ~0xffff}'); e(f'ds_read_b128 v[20:23], v2 offset:{LF1 & 0xffff}')
    st = []
    for t in range(4):
        for u in range(4):
            pre = [f's_lshl_b32 s{sOS}, s{sNQ}, 17'] if t + u == 0 else [f's_add_u32 s{sOS}, s{sOS}, 4096'] if u == 0 else []
            st.append(pre + [(f'buffer_store_dwordx4 {rr(PARK((u*4+t)*4),4)}, v{OA}, s[{sO}:{sO+3}], s{sOS} offen offset:{u*1024}{POL[opt["opol"]]}', ('O1', t >> 1))])
    def stores(u):
        if u == opt['o1st'] and not opt['nost'] & 1: STQ.extend(st)
    stores(25)
    pl = opt['wog'] and opt['wogpos'] == 3
    np_ = opt['wogn']
    pcs = [wo_piece(k, 72 // np_, 1, 5, opt['wogp']) for k in range(np_)] if pl else []
    pc2 = [wo_piece(k, 72 // np_, 1, 5, 0) for k in range(np_)] if pl and opt['wog2'] else []
    h = wo_pull_pre(72 // np_, 1) if pl else []
    k1 = np_ // 3
    if opt['early']:
        for s_ in h: e(s_)
        rest = step(25, dma=('v', sVM(15 % 4), 'V15'), vms=pcs)
        assert not pcs
    else:
        rest = step(25, half=h, fills=[[]] * 5 + sum([[x, []] for x in pcs[:k1]], []))
        assert not h and not rest
    e('s_waitcnt lgkmcnt(0)')
    h = ['v_or3_b32 v2, v20, v21, v22', 'v_or_b32 v2, v2, v23', 's_nop 0', f'v_readfirstlane_b32 s{sF1}, v2']
    gp = []
    stores(26)
    if opt['cpf']:
        cp = code_pf(f'L_op-{NAME}_kernel', 6, 'v5', 6)
        h += cp[:6]; gp = [[], [cp[6], (cp[7], 'g'), cp[8]]]
    rest = step(26, dma=None if opt['early'] else ('v', sVM(15 % 4), 'V15'), fills=([[]] * 4 if opt['early'] else []) + gp + sum([[[], x] for x in pcs[k1:2*k1]], []), half=h)
    assert not h and not rest
    wait(vm=11, lg0=True); e('s_barrier'); trace()
    ad = ['v_mul_u32_u24 v2, 3641, v0', 'v_lshrrev_b32 v2, 16, v2', 'v_mul_u32_u24 v3, 18, v2', 'v_sub_u32 v3, v0, v3',
          f's_mul_i32 s3, s{sNQ}, 288', f's_lshl_b32 s4, s{sW9}, 2', 's_add_u32 s3, s3, s4',
          'v_mul_u32_u24 v2, 1152, v2', 'v_lshl_add_u32 v2, v3, 4, v2', 'v_add_u32 v2, s3, v2', 'v_add_u32 v4, 864, v2']
    ad2 = []
    for i in range(9):
        R, c = divmod(64 * i, 18)
        ad2 += [[f'v_cmp_gt_u32 s[{4+2*(i&1)}:{5+2*(i&1)}], {18 - c}, v3'],
                [f'v_cndmask_b32 v{WOA[i]}, v4, v2, s[{4+2*(i&1)}:{5+2*(i&1)}]', f'v_add_u32 v{WOA[i]}, {R*1152 + c*16 - (i&3)*1024}, v{WOA[i]}']]
    seq = ad2[0] + ad2[2] + ['s_nop 0']
    for i in range(9): seq += ad2[2*i+1] + (ad2[2*i+4] if i + 2 < 9 else [])
    sd = lambda d: [f's_add_u32 s3, s{sNQ}, {d}', 's_and_b32 s3, s3, 3', f's_mul_i32 s{sWH(d)}, s3, 294912', f's_lshl_b32 s{sOH(d)}, s3, 17']
    ad = ad + seq
    stores(27)
    rest = step(27, fills=pcs[2*k1:], both=ad)
    assert not rest
    e('s_waitcnt lgkmcnt(0)')
    ad += [f's_mul_i32 s{sWH(0)}, s{sNQ}, 294912', f's_lshl_b32 s{sOH(0)}, s{sNQ}, 17'] + sd(1)
    ad += [f's_add_u32 s{sWC}, s{sW9}, {135168 - 9216}', f's_cmp_eq_u32 s{sWV}, 0', f's_cselect_b32 s{sWC}, 36864, s{sWC}']
    stores(28)
    rest = step(28, both=ad, fills=pc2)
    assert not rest
    for s_ in ad: e(s_)
    e(f's_andn2_b32 s{sF1}, s{sF1}, s{sSAFE}'); e(f's_cmp_lg_u32 s{sF1}, 0'); e('s_cbranch_scc1 L_redo')
    wait(vm=12, lg0=True); e('s_barrier'); trace()
    d0, d1 = dma_groups(0), dma_groups(1)
    for s_ in d0[0]: e(s_)
    d2 = dma_groups(2)
    d0[-1] += d1[0]; d1[-1] += d2[0]
    vms = d0[1:] + d1[1:] + d2[1:]
    stores(29)
    step(29, vms=vms)
    e('s_waitcnt lgkmcnt(0)'); trace_at(62)
    stores(30)
    step(30, vms=vms)
    wait(vm='V15', lg0=True); e('s_barrier'); trace()
    stores(31)
    sds = sd(2) + sd(3)
    step(31, doqk=False, vms=vms, both=sds)
    e('s_waitcnt lgkmcnt(0)')
    ad = ['v_lshrrev_b32 v2, 2, v0', 'v_mul_u32_u24 v2, 288, v2', 'v_and_b32 v3, 3, v0', f'v_lshl_add_u32 v{WR(0)}, v3, 3, v2',
          f'v_add_u32 v{WR(1)}, {W3SLOT[1]}, v{WR(0)}',
          f's_lshl_b32 s3, s{sNQ}, 2', f's_add_u32 s3, s3, s{sFA}', f'v_bfrev_b32 v{FAD}, 1', f'v_writelane_b32 v{FAD}, s3, 0']
    ad = sds + ad
    step(32, doqk=False, dosm=False, vms=vms, both=ad)
    assert not vms and not ad
    e('s_waitcnt lgkmcnt(0)')
    if opt['postA1'] < 0: post(('O1', 0), 1)
    rest = step(33, doqk=False, dosm=False, dovr=False, spill=False, sumfirst=True, fills=[[]] * 6 + sumcheck(LF2))
    assert not rest
    INIT[0] = 0
    for g_ in STQ:
        for s_ in g_: et(s_)
    STQ.clear()
    wait(vm=('W3', 0), lg0=True); e('s_barrier'); trace()

def tmap(s, T):
    return (T & 1, T >> 1) if s == 7 else divmod(T, 9)
def w3read(s, T, kk, h):
    kp, n = tmap(s, T)
    ks, sl = 2 * kp + kk, s % 3
    off = ks * 9216 + h * 4608 + n * 32
    if sl == 2: sl, off = (0, off + 36864) if ks == 0 else (1, off + 36864 - 9216)
    LG.add(('W3', s, T))
    return f'ds_read_b64_tr_b16 {ar(WF3(s*18+T,kk)+2*h,2)}, v{WR(sl)} offset:{off}'

def oproj():
    lab('L_op')
    LG.q = []
    e(f'v_mov_b32 v3, {LF2 & ~0xffff}'); e(f'ds_read_b128 v[236:239], v3 offset:{LF2 & 0xffff}'); LG.add('f2')
    for T in range(2):
        for kk in range(2):
            for h in range(2): e(w3read(0, T, kk, h))
    cv = []
    n = 0
    o2 = []
    for t in range(4):
        for u in range(4):
            cv += oconv(u, t, 12 if n & 1 else 228 + 4, lambda j: ('v', 160 + (u*4+t)*4 + j), opt['pkmul']); n += 1
            pre = [f's_add_u32 s{sOS}, s{sOH(0)}, {65536 + t*4096}'] if u == 0 else []
            it = (pre, f'buffer_store_dwordx4 {rr(OF(1,t,u),4)}, v{OA}, s[{sO}:{sO+3}], s{sOS} offen offset:{u*1024}{POL[opt["opol"]]}', ('O2', t >> 1))
            if not opt['nost'] & 2: cv.append(lambda it=it: o2.append(it))
    f2 = ['v_or3_b32 v236, v236, v237, v238', 'v_or_b32 v236, v236, v239', 's_nop 0', f'v_readfirstlane_b32 s{sF1}, v236']
    cv = f2 + cv
    late = []
    lastst = -99
    for s in range(8):
        vm = []
        if 1 <= s < 7:
            d, blk = STG[s + 1]
            for ks in range(4):
                for u in range(4):
                    pre = [f's_add_u32 s{sOT(ks)}, s{sOH(d)}, {blk*65536 + ks*4096}'] if u == 0 else []
                    vm.append((pre, f'buffer_load_dwordx4 {rr(OF(s+1,ks,u),4)}, v{OA}, s[{sO}:{sO+3}], s{sOT(ks)} offen offset:{u*1024}{POL[opt["olp"]]}', ('O', s + 1, ks >> 1)))
        wl = [wo_dma(s + 2, i) + (('W3', s + 2),) for i in range(9)] if 1 <= s < 6 else []
        al = vm + wl
        span = 100 if s == 6 else 138
        pos = {2 + (n * span) // max(len(al), 1): it for n, it in enumerate(al)}
        if s in (1, 4):
            pos = {2 + 5 * n: it for n, it in enumerate(vm[:8] + wl)}
            pos.update({90 + 6 * n: it for n, it in enumerate(vm[8:])})
        pos2 = {}
        for g, it in sorted(pos.items()):
            while (g & 7) < 2 or g in pos2: g += 1
            pos2[g] = it
        pos = pos2
        assert not pos or max(pos) < 144, (s, max(pos))
        if s == 5:
            late = [f's_mul_i32 s3, s{sWV}, 5120', f'v_lshl_add_u32 v{RA(0)}, v0, 4, s3', 's_add_u32 s3, s3, 4096', f'v_lshl_add_u32 v{RA(1)}, v0, 3, s3']
            for u in range(1, 4):
                late += [f's_add_u32 s3, s{sKQ}, {u}', 's_and_b32 s3, s3, 3', f's_mul_i32 s3, s3, {RSZ//4}', f's_add_u32 s{sRS(u)}, s3, {(u-1)*20480}']
            late += [f's_mul_i32 s{sRL(1)}, s{sKQ}, {RSZ//4}', f's_add_u32 s{sRL(2)}, s{sRL(1)}, 20480', f's_add_u32 s{sRL(3)}, s{sRL(1)}, 40960']
            late += [f's_mul_i32 s3, s{sB}, 240', f's_lshl_b32 s4, s{sWV}, 6', 's_add_u32 s3, s3, s4', f's_lshl_b32 s4, s{sKQ}, 4', 's_add_u32 s3, s3, s4',
                     's_mul_i32 s3, s3, 2304', f's_mul_i32 s4, s{sP}, 1152', 's_add_u32 s3, s3, s4', f's_mul_i32 s4, s{sNQ}, 288', 's_add_u32 s3, s3, s4',
                     f's_cmp_eq_u32 s{sPAD}, 0', f's_cselect_b32 s3, {OOB}, s3',
                     'v_and_b32 v17, 15, v0', 'v_mul_u32_u24 v17, 2304, v17', 'v_add_u32 v17, s3, v17', 'v_lshrrev_b32 v18, 4, v0',
                     f'v_lshl_add_u32 v{OUTB}, v18, 3, v17', 'v_and_b32 v19, 1, v18', 'v_lshl_add_u32 v17, v19, 5, v17', 'v_lshrrev_b32 v18, 1, v18',
                     f'v_lshl_add_u32 v{OUTA}, v18, 4, v17',
                     f's_lshl_b32 s3, s{sKQ}, 2', f's_add_u32 s3, s3, s{sFC}', f'v_writelane_b32 v{FAD}, s3, 0']
        def send(m, u):
            r = []
            src = []
            for n in range(2 * m, min(2 * m + 2, 9)):
                k, a = ACC3(n, u)
                if k == 'a':
                    t = 224 + 4 * (n - 5)
                    r += [f'v_accvgpr_read_b32 v{t+j}, a{a+j}' for j in range(4)]; a = t
                src.append(a)
            d = src[0]
            for i, a in enumerate(src): r += [f'v_cvt_pk_bf16_f32 v{d+2*i+j}, v{a+2*j}, v{a+2*j+1}' for j in range(2)]
            if m < 4: r.append((f'buffer_store_dwordx4 {vr(d,4)}, v{RA(0)}, s[{sR}:{sR+3}], s{sRS(u)} offen offset:{m*1024} sc1', 'snd'))
            else: r.append((f'buffer_store_dwordx2 {vr(d,2)}, v{RA(1)}, s[{sR}:{sR+3}], s{sRS(u)} offen sc1', 'snd'))
            return r
        for g in range(144):
            T, u, kk = g >> 3, (g >> 1) & 3, g & 1
            kp, n = tmap(s, T)
            if g == 128 and s < 7:
                wait(vm=('W3', s + 1), lg0=True)
                if s == 0:
                    e(f's_andn2_b32 s{sF1}, s{sF1}, s{sSAFE}'); e(f's_cmp_lg_u32 s{sF1}, 0'); e('s_cbranch_scc1 L_redo')
                e('s_barrier'); trace()
                if s in (0, 3): flagcheck('AB'[s // 3] + '1', sFA, 1 + 2 * (s // 3), True); trace_at(58 + s)
            elif s in (1, 4) and g == 88:
                wait(lg0=True); flagcheck('AB'[s // 3] + '2', sFA, 2 + 2 * (s // 3), True)
            elif g & 7 == 0:
                if s == 7 and g == 0: wait(vm=('O', s, 1), lg=('W3', s, T))
                elif s >= 2 and g in (0, 72): wait(vm=('O', s, g // 72), lg=('W3', s, T))
                else: wait(lg=('W3', s, T))
            gg = s * 144 + g
            if gg == opt['postA1']: post(('O1', 0), 1)
            if gg == opt['postA']: post(('O1', 1), 2); trace_at(57)
            if gg == opt['postB1']: assert len(o2) <= 8 and not cv; post(('O2', 0), 3)
            if gg == opt['postB2']: assert not o2; post(('O2', 1), 4)
            if (s, g) == (1, 40): trace_at(59)
            if (s, g) == (1, 80): trace_at(60)
            acc = rr(ACC3(n, u), 4)
            c = '0' if (s == 0 and kp == 0 and kk == 0) else acc
            e(f'{MF} {acc}, {ar(WF3(s*18+T,kk),4)}, {rr(OF(s,2*kp+kk,u),4)}, {c}')
            busy = False
            if (g & 7) < 2:
                T2, s2 = (T + 2) % 18, s + (T + 2) // 18
                if s2 < 8:
                    for h in range(2): e(w3read(s2, T2, g & 1, h))
                    busy = True
            if g + 1 in pos:
                for s_ in pos[g + 1][0]: e(s_)
            if g in pos:
                e(pos[g][1]); VM.add(pos[g][2]); busy = True
            if (s, g) in ((0, 100), (1, 60), (3, 100), (4, 60)):
                e(f's_buffer_load_dwordx4 s[4:7], s[{sF}:{sF+3}], s{sFA} glc')
            if o2 and not busy and gg >= opt['o2pos'] and gg - lastst >= opt['o2sp']:
                it = o2.pop(0)
                for s_ in it[0]: e(s_)
                e(it[1]); VM.add(it[2]); busy = True; lastst = gg
            if s == 7 and g >= 34 and (g & 31) == 2:
                for u2 in (1, 2, 3): late += send((g >> 5) - 1, u2)
            if not busy and g >= 2:
                src = cv if cv else late
                k = 0
                while src and k < ((opt['cvn'] + (g & 1)) // 2 if cv else 2):
                    x = src.pop(0)
                    if isinstance(x, tuple) and k >= 1: src.insert(0, x); break
                    et(x)
                    k += 0 if callable(x) else 2 if isinstance(x, tuple) else 1
            if s == 1 and g == 70: assert not cv, len(cv)
    trace()
    for s_ in late: et(s_)
    e('s_nop 4')
    for u2 in (1, 2, 3):
        for s_ in send(4, u2): et(s_)
    e('v_mov_b32 v2, 1')
    e('s_waitcnt vmcnt(0)')
    e(f'buffer_store_dword v2, v{FAD}, s[{sF}:{sF+3}], 0 offen sc1')
    trace()
    e(f'buffer_load_dwordx4 v[2:5], off, s[{sF}:{sF+3}], s{sFC} sc1'); e('s_waitcnt vmcnt(0)')
    flagcheck('C', sFC, 1)
    trace()
    VM.q = []
    e('s_mov_b32 s4, 0x3f80'); e('s_mov_b32 s5, 0x3f800000')
    IN = lambda m, u: 68 + (m * 3 + u - 1) * 4
    for m in range(5):
        for u in (1, 2, 3):
            if m < 4: e(f'buffer_load_dwordx4 {vr(IN(m,u),4)}, v{RA(0)}, s[{sR}:{sR+3}], s{sRL(u)} offen offset:{m*1024} sc1')
            else: e(f'buffer_load_dwordx2 {vr(IN(m,u),2)}, v{RA(1)}, s[{sR}:{sR+3}], s{sRL(u)} offen sc1')
            VM.add(m)
    for m in range(5):
        wait(vm=m)
        d = 180 + m * 4
        ns = range(2 * m, min(2 * m + 2, 9))
        for u in (1, 2, 3):
            for n in ns:
                a = ACC3(n, 0)[1]
                for r in range(4): e(f'v_dot2c_f32_bf16 v{a+r}, s{4 + (r&1)}, v{IN(m,u) + 2*(n&1) + (r>>1)}')
        e('s_nop 1')
        for n in ns:
            a = ACC3(n, 0)[1]
            for j in range(2): e(f'v_cvt_pk_bf16_f32 v{d+2*(n&1)+j}, v{a+2*j}, v{a+2*j+1}')
        if m < 4:
            e('s_nop 1')
            e(f'v_permlane16_swap_b32 v{d}, v{d+2}'); e(f'v_permlane16_swap_b32 v{d+1}, v{d+3}')
            e(f'buffer_store_dwordx4 {vr(d,4)}, v{OUTA}, s[{sOut}:{sOut+3}], 0 offen offset:{m*64}{POL[opt["outp"]]}'); VM.add('out')
        else:
            e(f'buffer_store_dwordx2 {vr(d,2)}, v{OUTB}, s[{sOut}:{sOut+3}], 0 offen offset:256{POL[opt["outp"]]}')

def descriptor(name, vg=512):
    return f'''.amdhsa_kernel {name}
  .amdhsa_next_free_vgpr {vg}
  .amdhsa_next_free_sgpr 102
  .amdhsa_accum_offset 256
  .amdhsa_group_segment_fixed_size 0
  .amdhsa_kernarg_size 104
  .amdhsa_user_sgpr_count 2
  .amdhsa_user_sgpr_kernarg_segment_ptr 1
  .amdhsa_system_sgpr_workgroup_id_x 1
.end_amdhsa_kernel'''

L.append(f'''; one launch: projection of q, attention (two heads per workgroup), output projection over eight heads, four-way sum
; @launch grid=(256,1,1) block=(256,1,1) lds=163840
.amdgcn_target "amdgcn-amd-amdhsa--gfx950"
.text
.globl {NAME}_kernel
.p2align 8
.type {NAME}_kernel,@function
{NAME}_kernel:''')
setup1()
qproj_start()
vmq = list(VM.q)
setup1b()
lab('L_go')
qproj()
attention()
tail()
oproj()
if opt['trace']:
    trace()
    e('s_lshl_b32 s3, s2, 2'); e(f's_add_u32 s3, s3, s{sWV}'); e('s_lshl_b32 s3, s3, 8')
    e('v_lshl_add_u32 v8, v0, 2, s3')
    e(f'buffer_store_dword v27, v8, s[{sST}:{sST+3}], 0 offen')
e('s_endpgm')
lab('L_redo')
e(f's_mov_b32 s{sSAFE}, 1'); e(f's_mov_b32 s{sFIRST}, 0'); e('s_waitcnt vmcnt(0) lgkmcnt(0)'); e('s_barrier')
e('v_and_b32 v1, 15, v0'); e('v_lshrrev_b32 v2, 4, v0')
staging()
VM.q = []
qproj_start()
assert VM.q == vmq
e('s_branch L_go')
for s_ in OUTL:
    if s_.endswith(':'): L.append(s_)
    else: e(s_)
lab('L_end')
e('s_endpgm')
L.append('.section .rodata,"a"\n.p2align 6\n' + descriptor(NAME + '_kernel'))
open(sys.argv[1], 'w').write('\n'.join(L) + '\n')
```

```python
import sys
NAME = 'concat_heads__mha_block_cached__gqa_block_cached__near_ridge'
opt = dict(xnt=0, wnt=0, trace=0, forcesafe=0, cpf=1, cpfs=5, l2p=3, gpol=1, gpos=100, dsp=7, wog=1, wogp=0, wont=0,
           opol=2, olp=0, only=0, spin=15, perm=0, wogpos=3, wogs=123, wogn=3, wog2=0, pkmul=0, postA=90, postB1=330, postB2=526, atpos=1, o2pos=50, o2sp=23, o1sp=26, o1st=26, vsp=3, early=1, nost=0, outp=0, o1aft=0, cvn=5, postA1=-1, nox=0, dsp6=5, q3=4,
           xo=0, xom=15, kpol=1, vpol=1, kvp=1, kvpol=1, fpol=2, dfr=3, dfx=44, dla=4, dfv=10, dfb=1, dfp=70, df2=1, dfs=20, dfe=5, mord=1, dsp0=4)
for a in sys.argv[2:]:
    k, v = a.split('='); assert k in opt, k; opt[k] = int(v)

POL = ['', ' nt', ' sc1', ' sc0 sc1', ' sc1 nt', ' sc0 sc1 nt']
vr = lambda b, n: f'v[{b}:{b+n-1}]'
ar = lambda b, n: f'a[{b}:{b+n-1}]'
def rr(kb, n): return vr(kb[1], n) if kb[0] == 'v' else ar(kb[1], n)
MF = 'v_mfma_f32_16x16x32_bf16'
L = []
INIT = [0]
def e(s):
    if INIT[0] and opt['only'] and (s.startswith('v_') or s.startswith('ds_')) and not s.startswith('v_writelane'): return
    L.append('    ' + s)
def lab(s): L.append(s + ':')
def et(s):
    if isinstance(s, tuple):
        e(s[0])
        if not s[0].startswith('s_nop'): VM.add(s[1])
    elif callable(s): s()
    else: e(s)

class Cnt:
    def __init__(self): self.q = []
    def add(self, tag): self.q.append(tag)
    def need(self, tags):
        if not isinstance(tags, list): tags = [tags]
        idx = [i for i, t in enumerate(self.q) if t in tags]
        if not idx: return None
        n = len(self.q) - 1 - idx[-1]
        self.q = self.q[idx[-1] + 1:]
        return n
VM, LG = Cnt(), Cnt()
def wait(vm=None, lg=None, lg0=False):
    p = []
    if vm is not None:
        n = VM.need(vm)
        if n is not None: p.append(f'vmcnt({min(n,63)})')
    if lg0:
        LG.q = []; p.append('lgkmcnt(0)')
    elif lg is not None:
        n = LG.need(lg)
        if n is not None: p.append(f'lgkmcnt({min(n,15)})')
    if p: e('s_waitcnt ' + ' '.join(p))

WS_O = 0
WS_R = 64 * 524288
RSZ = 4 * 3 * 4 * 5120
WS_F = WS_R + 64 * RSZ
WS_STAMP = 0x4000000
OOB = 0x80000000
LF1, LF2 = 0x27e00, 0x27e10

sK, sV, sX, sW, sO, sWO, sR, sF, sD, sOut, sCP, sST = 8, 12, 16, 20, 24, 28, 64, 68, 72, 76, 80, 84
sKM = lambda i: 32 + i
sVM = lambda i: 36 + i
sP, sHP, sB, sWV = 40, 41, 42, 43
sKO, sVO, sXO, sWQO = 44, 45, 46, 47
sW8 = 48
sBLK, sLOOP, sSAFE, sKQ, sNQ = 49, 50, 51, 52, 53
sFAIL = 54
sPAD, sFIRST, sFA, sFC, sW9, sEXIT, sF1 = 88, 89, 90, 91, 92, 93, 94
sWH = lambda d: 32 + d
sOH = lambda d: 36 + d
sOT = lambda t: 56 + t
sWOO = 60
sOS = 95
sRS = lambda u: 44 + u - 1
sRL = lambda u: 61 + u - 1
KA = lambda ks: 8 + ks
VA = lambda dt: 12 + dt
KD = lambda m: 20 + m
VD = lambda m: 24 + (m & 1)
OA = 26
S = lambda buf, kt, qt: 32 + buf * 32 + (qt * 2 + kt) * 4
P = lambda buf, qt: 96 + buf * 16 + qt * 4
Q = lambda qt, ks: 160 + (qt * 4 + ks) * 4
NM = lambda qt: 224 + qt * 4
def PARK(i):
    if i < 16: return ('v', 240 + i)
    if i < 20: return ('v', 28 + i - 16)
    return ('a', 212 + i - 20)
O = lambda dt, qt: (dt * 4 + qt) * 4
KF = lambda kt, ks: 128 + (kt * 4 + ks) * 4
VF = lambda d4, ks: 160 + (d4 * 2 + ks) * 4
LS = lambda qt: 192 + qt * 4
ONES = 208
RC = lambda qt: 224 + 2 * qt
XF = lambda buf, qt, ks: 128 + buf * 32 + (qt * 2 + ks) * 4
WFR = lambda T, ks: 192 + (T & 3) * 8 + ks * 4
XD = lambda m: 32 + m
WD = lambda m: 40 + m
WA = lambda hi, t: 48 + hi * 8 + t
XA = lambda ks: 6 + ks
def ACC(T, qt):
    if T >= 8: return ('a', ((T - 8) * 4 + qt) * 4)
    i = qt * 4 + (T >> 1)
    return ('v', (96 + 8 * (i >> 1) if i & 1 else 160 + 4 * i) + 4 * (T & 1))
XSLOT = [32768, 0]
WSLOT = [98304, 65536, 131072]
GK = 64
GX, GW, GD = 28, 26, 29
WOA = [6, 7, 20, 21, 22, 23, 24, 25, 1]
WR = lambda sl: 8 + sl
FAD = 11
RA = lambda j: 12 + j
OUTA, OUTB = 15, 16
W3SLOT = [0, 98304]
sWC = 99
WF3 = lambda T, kk: 144 + (T & 3) * 8 + kk * 4
def ACC3(n, u):
    if u < 3: return ('v', 32 + (u * 9 + n) * 4)
    return ('v', 140 + 4 * n) if n < 5 else ('a', 128 + 4 * (n - 5))
STG = [(0, 0), (0, 1), (1, 0), (2, 0), (3, 0), (1, 1), (2, 1), (3, 1)]
def OF(s, ks, u):
    if s == 0: return PARK((u * 4 + ks) * 4)
    if s == 1: return ('v', 160 + (u * 4 + ks) * 4)
    if s == 5 and u == 0 and opt['dfr'] >= 3: return ('v', 240 + ks * 4)
    return ('a', (s & 1) * 64 + ks * 16 + u * 4)

sXM = 41
def adv(r):
    if not opt['xo']: return [f's_add_u32 s{r}, s{r}, 16384']
    l = 0 if r == sKO else 1
    return [f's_add_u32 s{l}, s{l}, 16384', f's_xor_b32 s{r}, s{l}, s{sXM}']
def dma_k(m): return f'buffer_load_dwordx4 v{KD(m)}, s[{sK}:{sK+3}], s{sKO} offen offset:{m*1024}{POL[opt["kpol"]]} lds'
def dma_v(m): return f'buffer_load_dwordx4 v{VD(m)}, s[{sV}:{sV+3}], s{sVO} offen offset:{m*1024}{POL[opt["vpol"]]} lds'

def srd(s, lo, hi, off, size):
    if off is None:
        e(f's_mov_b32 s{s}, s{lo}'); e(f's_mov_b32 s{s+1}, s{hi}')
    else:
        e(f's_add_u32 s{s}, s{lo}, {off}'); e(f's_addc_u32 s{s+1}, s{hi}, 0')
    e(f's_mov_b32 s{s+2}, {size}'); e(f's_mov_b32 s{s+3}, 0x20000')

def trace():
    if opt['trace']:
        e('s_memtime s[96:97]' if opt['trace'] == 1 else 's_memrealtime s[96:97]'); e('s_mov_b32 s98, m0'); e('s_mov_b32 m0, s100'); e('s_waitcnt lgkmcnt(0)')
        e('v_writelane_b32 v27, s96, m0'); e('s_mov_b32 m0, s98')
        e('s_add_u32 s100, s100, 1')

def trace_at(lane):
    if opt['trace']:
        e('s_memrealtime s[96:97]'); e('s_waitcnt lgkmcnt(0)'); e(f'v_writelane_b32 v27, s96, {lane}')

def code_srd(s, entry, end):
    e(f's_getpc_b64 s[{s}:{s+1}]')
    lab('L_pc')
    e(f's_sub_u32 s{s}, s{s}, L_pc-{entry}'); e(f's_subb_u32 s{s+1}, s{s+1}, 0')
    e(f's_mov_b32 s{s+2}, {end}-{entry}'); e(f's_mov_b32 s{s+3}, 0x20000')
def code_pf(off, vt, dst=None, st=3):
    return [f's_lshr_b32 s{st}, s2, 3', f's_lshl_b32 s{st}, s{st}, 2', f's_add_u32 s{st}, s{st}, s{sWV}', f's_lshl_b32 s{st}, s{st}, 8', f's_add_u32 s{st}, s{st}, {off}',
            f'v_lshlrev_b32 v{vt}, 7, v0', 's_mov_b64 exec, 3', f'buffer_load_dword {dst or "v%d" % vt}, v{vt}, s[{sCP}:{sCP+3}], s{st} offen', 's_mov_b64 exec, -1']

def setup1():
    e('s_cmp_ge_u32 s2, 256')
    e('s_cbranch_scc1 L_end')
    if opt['perm']:
        e('s_and_b32 s3, s2, 7'); e('s_lshl_b32 s3, s3, 3'); e('s_lshr_b32 s4, s2, 3'); e('s_and_b32 s4, s4, 7'); e('s_or_b32 s3, s3, s4')
        e('s_and_b32 s2, s2, 0xc0'); e('s_or_b32 s2, s2, s3')
    if opt['trace']: e('s_mov_b32 s100, 0'); trace()
    e('s_and_b32 s3, s2, 7'); e('s_lshr_b32 s4, s2, 3')
    e(f's_lshr_b32 s{sP}, s3, 2')
    e(f's_mul_i32 s5, s{sP}, 40')
    e('s_add_u32 s6, s0, s5'); e('s_addc_u32 s7, s1, 0')
    e('s_load_dwordx8 s[56:63], s[6:7], 0')
    e('s_load_dwordx2 s[94:95], s[6:7], 32')
    e('s_load_dwordx4 s[96:99], s[0:1], 80')
    e('s_load_dwordx2 s[50:51], s[0:1], 96')
    e(f's_and_b32 s{sKQ}, s3, 3'); e(f's_and_b32 s{sNQ}, s4, 3'); e(f's_lshr_b32 s{sB}, s4, 2')
    e(f's_lshl_b32 s3, s{sKQ}, 2'); e(f's_add_u32 s{sHP}, s3, s{sNQ}')
    e('v_lshrrev_b32 v1, 6, v0'); e('v_and_b32 v0, 63, v0'); e(f'v_readfirstlane_b32 s{sWV}, v1')
    e('v_and_b32 v1, 15, v0')
    e('v_lshrrev_b32 v2, 4, v0')
    e(f's_lshl_b32 s{sW8}, s{sWV}, 13')
    if opt['cpf']:
        code_srd(sCP, NAME + '_kernel', 'L_end')
        for s_ in code_pf(0, 31): e(s_)
    staging()
    e('s_waitcnt lgkmcnt(0)')
    e(f's_mul_i32 s3, s{sB}, 276480'); srd(sX, 56, 57, 's3', 276480)
    e(f's_lshl_b32 s3, s{sHP}, 9'); srd(sW, 62, 63, 's3', 0)
    e(f's_sub_u32 s{sW+2}, {576*8192}, s3')

def staging():
    e(f's_mul_i32 s3, s{sWV}, {64*1152}')
    e('v_lshrrev_b32 v3, 3, v0'); e('v_mul_u32_u24 v3, 1152, v3'); e('v_add_u32 v3, s3, v3')
    e('v_and_b32 v4, 7, v0'); e('v_xor_b32 v4, v4, v2')
    e(f'v_lshl_add_u32 v{XD(0)}, v4, 4, v3'); e('v_xor_b32 v4, 4, v4'); e(f'v_lshl_add_u32 v{XD(1)}, v4, 4, v3')
    for t in range(3, -1, -1):
        e(f's_add_u32 s3, s{sKQ}, {t}'); e('s_and_b32 s3, s3, 3'); e('s_mul_i32 s3, s3, 18432')
        for o in (1, 0):
            m = 2 * t + o
            e(f's_add_u32 s4, s3, {o*8192}'); e(f'v_add_u32 v{XD(m)}, s4, v{XD(o)}')
    e(f's_lshl_b32 s3, s{sWV}, 17')
    e('v_lshrrev_b32 v3, 5, v0'); e('v_lshl_add_u32 v5, v3, 13, s3')
    e('v_and_b32 v4, 31, v0')
    for m in range(8):
        e(f'v_or_b32 v6, {((2*m)&3) | ((m>>2)<<2)}, v3'); e('v_lshlrev_b32 v6, 1, v6')
        e('v_xor_b32 v6, v6, v4'); e('v_lshl_add_u32 v6, v6, 4, v5')
        e(f'v_add_u32 v{WD(m)}, {m*16384 - (m&3)*1024}, v6')
    if opt['l2p']:
        e(f's_mul_i32 s3, s{sNQ}, 60'); e(f's_mul_i32 s4, s{sWV}, 15'); e('s_add_u32 s3, s3, s4'); e('s_mul_i32 s3, s3, 1152')
        e(f'v_mul_u32_u24 v4, 1152, v0'); e('v_cmp_gt_u32 vcc, 15, v0'); e('v_add_u32 v4, s3, v4')
        e(f'v_add_u32 v5, {(128 - 15*1152) & 0xffffffff}, v4'); e('v_cndmask_b32 v4, v5, v4, vcc')
        e('v_cmp_gt_u32 vcc, 30, v0'); e('v_bfrev_b32 v6, 1')
        e(f's_lshl_b32 s3, s{sB}, 2'); e(f'v_cndmask_b32 v{GX}, v6, v4, vcc')
        e(f's_add_u32 s3, s3, s{sWV}'); e('s_lshl_b32 s3, s3, 14')
        e('v_and_b32 v5, 3, v0'); e('v_lshl_add_u32 v5, v5, 7, s3'); e('v_bfe_u32 v3, v0, 2, 1'); e('v_lshl_add_u32 v5, v3, 13, v5')
        e('v_cmp_gt_u32 vcc, 16, v0'); e('v_lshrrev_b32 v3, 3, v0'); e('v_lshl_add_u32 v5, v3, 19, v5')
        e(f'v_cndmask_b32 v{GW}, v6, v5, vcc')

def setup1b():
    e(f's_lshl_b32 s3, s{sB}, 5'); e(f's_lshl_b32 s4, s{sHP}, 1'); e('s_add_u32 s3, s3, s4'); e('s_lshl_b32 s3, s3, 18')
    srd(sK, 58, 59, 's3', 524288); srd(sV, 60, 61, 's3', 524288)
    e(f's_mul_i32 s3, s{sKQ}, 1179648'); srd(sWO, 94, 95, 's3', 1179648)
    e(f's_lshl_b32 s5, s{sP}, 3'); e(f's_add_u32 s5, s5, s{sB}'); e('s_lshl_b32 s5, s5, 2')
    e(f's_add_u32 s6, s5, s{sKQ}'); e(f's_add_u32 s7, s5, s{sNQ}')
    e('s_lshl_b32 s3, s6, 19'); srd(sO, 50, 51, 's3', 524288)
    e(f's_mul_i32 s3, s7, {RSZ}'); e(f's_add_u32 s3, s3, {WS_R}'); srd(sR, 50, 51, 's3', RSZ)
    srd(sF, 50, 51, WS_F, 16384)
    srd(sOut, 96, 97, None, 8*240*1152*2); srd(sD, 98, 99, None, 256)
    if opt['trace']: srd(sST, 50, 51, WS_STAMP, 0x100000)
    e(f's_lshl_b32 s{sFA}, s6, 7'); e(f's_lshl_b32 s{sFC}, s7, 7'); e(f's_add_u32 s{sFC}, s{sFC}, 8192')
    e(f's_lshl_b32 s3, s{sWV}, 4'); e(f's_add_u32 s{sFA}, s{sFA}, s3'); e(f's_add_u32 s{sFC}, s{sFC}, s3')
    e(f's_sub_u32 s3, 3, s{sKQ}'); e(f's_cmp_eq_u32 s{sWV}, 3'); e(f's_cselect_b32 s{sPAD}, s3, 7')
    e(f's_mul_i32 s{sW9}, s{sWV}, 9216')
    e(f's_mov_b32 s{sSAFE}, {opt["forcesafe"]}'); e(f's_mov_b32 s{sFIRST}, 1')
    if opt['xo'] == 1: e('s_lshr_b32 s3, s2, 3')
    if opt['xo'] == 2: e('s_mov_b32 s3, s2')
    if opt['xo'] == 3: e('s_lshr_b32 s3, s2, 4'); e('s_xor_b32 s3, s3, s2')
    if opt['xo'] == 4: e('s_lshr_b32 s3, s2, 4')
    if opt['xo'] == 5: e(f's_lshl_b32 s3, s{sNQ}, 2'); e(f's_and_b32 s4, s{sB}, 3'); e('s_or_b32 s3, s3, s4')
    if opt['xo'] == 6: e(f's_lshl_b32 s3, s{sKQ}, 2'); e(f's_or_b32 s3, s3, s{sNQ}')
    if opt['xo'] == 7: e(f's_lshl_b32 s3, s{sB}, 1'); e(f's_or_b32 s3, s3, s{sP}')
    if opt['xo'] == 8: e(f's_lshl_b32 s3, s{sB}, 2'); e(f's_or_b32 s3, s3, s{sKQ}')
    if opt['xo'] == 9: e('s_mul_i32 s3, s2, 0x9e3779b1'); e('s_lshr_b32 s3, s3, 28')
    if opt['xo'] == 10: e('s_lshr_b32 s3, s2, 3'); e(f's_lshl_b32 s4, s{sKQ}, 2'); e('s_add_u32 s3, s3, s4'); e(f's_lshr_b32 s4, s{sB}, 2'); e('s_lshl_b32 s4, s4, 1'); e('s_xor_b32 s3, s3, s4')
    if opt['xo']: e(f's_and_b32 s3, s3, {opt["xom"]}'); e(f's_lshl_b32 s{sXM}, s3, 14')

def setup2():
    e('v_lshrrev_b32 v3, 1, v0'); e('v_and_b32 v3, 7, v3'); e('v_xor_b32 v3, v3, v2')
    e(f'v_lshl_add_u32 v4, v1, 7, s{sW8}')
    e(f'v_lshl_add_u32 v{XA(0)}, v3, 4, v4'); e('v_xor_b32 v3, 4, v3'); e(f'v_lshl_add_u32 v{XA(1)}, v3, 4, v4')
    e('v_bfe_u32 v3, v0, 2, 2')
    e('v_lshl_add_u32 v4, v2, 3, v3'); e('v_lshlrev_b32 v4, 9, v4'); e('v_add_u32 v4, 0x10000, v4')
    e('v_and_b32 v5, 3, v0')
    e('v_lshl_add_u32 v4, v5, 3, v4')
    e('v_and_b32 v5, 1, v2'); e('v_lshl_or_b32 v3, v5, 2, v3')
    for t in range(8):
        e(f'v_xor_b32 v5, {t}, v3'); e(f'v_lshl_add_u32 v{WA(0,t)}, v5, 5, v4')
    for t in range(8): e(f'v_add_u32 v{WA(1,t)}, 0x8000, v{WA(0,t)}')
    e('v_lshrrev_b32 v3, 1, v2'); e('v_and_b32 v4, 1, v2'); e('v_lshl_or_b32 v3, v4, 1, v3')
    for ks in range(4):
        e(f'v_or_b32 v4, {4*ks}, v3'); e('v_xor_b32 v4, v4, v1'); e('v_lshlrev_b32 v4, 4, v4')
        e(f'v_lshl_add_u32 v{KA(ks)}, v1, 8, v4')
    e('v_lshrrev_b32 v4, 2, v0')
    e('v_lshlrev_b32 v5, 8, v4'); e('v_and_b32 v3, 3, v0'); e('v_lshl_add_u32 v5, v3, 3, v5'); e('v_add_u32 v5, 0x10000, v5')
    e('v_and_b32 v4, 7, v4')
    for dt in range(8):
        e(f'v_xor_b32 v3, {dt}, v4'); e(f'v_lshl_add_u32 v{VA(dt)}, v3, 5, v5')
    if opt['kvp']:
        e(f's_lshl_b32 s3, s{sWV}, 12'); e(f'v_lshl_add_u32 v{GK}, v0, 7, s3'); e('v_cmp_gt_u32 vcc, 32, v0'); e('v_bfrev_b32 v3, 1'); e('s_nop 0')
        e(f'v_cndmask_b32 v{GK}, v3, v{GK}, vcc')
    e(f's_lshl_b32 s3, s{sWV}, 12')
    e('v_lshl_add_u32 v5, v2, 8, s3')
    for m in range(4):
        e(f'v_or_b32 v3, {4*m}, v2'); e('v_xor_b32 v3, v3, v1'); e(f'v_lshl_add_u32 v{KD(m)}, v3, 4, v5')
    for m in range(2):
        e(f'v_or_b32 v3, {4*m}, v2'); e('v_lshlrev_b32 v3, 1, v3'); e('v_xor_b32 v3, v3, v1'); e(f'v_lshl_add_u32 v{VD(m)}, v3, 4, v5')
    for g in range(4):
        e(f's_add_u32 s{sKM(g)}, s3, {g*16384}')
        e(f's_add_u32 s{sVM(g)}, s3, {65536 + ((g+2)&3)*16384}')

def x_dma(s, m):
    r = []
    if m & 1 == 0: r.append(('s', f's_add_u32 m0, s{sW8}, {XSLOT[s&1] + (m>>1)*2048}'))
    r.append(('g', f'buffer_load_dwordx4 v{XD(m)}, s[{sX}:{sX+3}], s{sXO} offen offset:{(m&1)*1024}{POL[opt["xnt"]]} lds', ('X', s)))
    if m == 7: r.append(('a', f's_add_u32 s{sXO}, s{sXO}, 128'))
    return r
def w_dma(s, m):
    r = []
    if m & 3 == 0: r.append(('s', f's_add_u32 m0, s{sW8}, {WSLOT[s%3] + (m>>2)*4096}'))
    r.append(('g', f'buffer_load_dwordx4 v{WD(m)}, s[{sW}:{sW+3}], s{sWQO} offen offset:{(m&3)*1024}{POL[opt["wnt"]]} lds', ('W', s)))
    if m == 7: r.append(('a', f's_add_u32 s{sWQO}, s{sWQO}, 524288'))
    return r
def kv_dma(kind, t, m):
    r = []
    if m == 0: r.append(('s', f's_mov_b32 m0, s{sKM(t) if kind == "K" else sVM(t)}'))
    r.append(('g', dma_k(m) if kind == 'K' else dma_v(m), (kind, t)))
    if m == 3:
        o = sKO if kind == 'K' else sVO
        for x in adv(o): r.append(('a', x))
    return r
def emit_dma_plain(items):
    for it in items:
        e(it[1])
        if it[0] == 's': e('s_nop 0')
        if it[0] == 'g': VM.add(it[2])
def wread(s, T, ks, h):
    sl = WSLOT[s % 3]
    hi = 0 if sl == 65536 else 1
    base = sl - 65536 - hi * 32768
    off = base + ks * 16384 + h * 2048 + (T >> 3) * 256
    assert off < 65536
    LG.add(('W', s, T))
    return f'ds_read_b64_tr_b16 {ar(WFR(T,ks)+2*h,2)}, v{WA(hi,T&7)} offset:{off}'
def xread(s, qt, ks):
    off = XSLOT[s & 1] + qt * 2048
    LG.add(('X', s))
    return f'ds_read_b128 {ar(XF(s&1,qt,ks),4)}, v{XA(ks)} offset:{off}'
def gather(st):
    VM.add('g'); VM.add('g')
    return [f's_mov_b32 s3, {st*128}', f's_mov_b32 s4, {st*524288}',
            f'buffer_load_dword v{GD}, v{GX}, s[{sX}:{sX+3}], s3 offen{POL[opt["gpol"]]}',
            f'buffer_load_dword v{GD}, v{GW}, s[{sW}:{sW+3}], s4 offen{POL[opt["gpol"]]}']

KVP = {0: ([], [('K', 0, 4), ('K', 1, 28), ('V', 0, 52), ('K', 2, 76), ('V', 1, 100)]),
       1: ([(2, 110, 'K', 0), (4, 110, 'K', 1)], [('K', 0, 4), ('K', 1, 28), ('V', 0, 52), ('K', 2, 76), ('V', 1, 100)]),
       2: ([(2, 110, 'K', 0), (4, 110, 'K', 1), (6, 82, 'V', 0)], [('K', 0, 4), ('K', 1, 28), ('V', 0, 52), ('V', 1, 76), ('K', 2, 100)]),
       3: ([(2, 110, 'K', 0), (4, 110, 'K', 1), (7, 200, 'K', 3), (7, 250, 'V', 2)], [('K', 0, 4), ('K', 1, 28), ('V', 0, 52), ('V', 1, 76), ('K', 2, 140)]),
       4: ([(2, 110, 'K', 0), (4, 110, 'K', 1), (6, 82, 'V', 0), (7, 150, 'K', 3), (7, 230, 'V', 2)], [('K', 0, 4), ('K', 1, 28), ('V', 0, 52), ('V', 1, 76), ('K', 2, 100)]),
       5: ([(2, 110, 'K', 0), (4, 110, 'K', 1), (5, 110, 'V', 0), (6, 82, 'V', 1), (7, 110, 'K', 3), (7, 190, 'V', 2), (7, 250, 'K', 4)],
           [('K', 0, 4), ('K', 1, 28), ('V', 0, 52), ('V', 1, 76), ('K', 2, 100)]),
       6: ([(2, 110, 'K', 0), (4, 110, 'K', 1), (5, 110, 'V', 0)], [('K', 0, 4), ('K', 1, 28), ('V', 0, 52), ('V', 1, 76), ('K', 2, 100)]),
       7: ([(2, 110, 'K', 0), (4, 110, 'K', 1), (6, 110, 'V', 0), (7, 170, 'K', 3), (7, 250, 'V', 2)], [('K', 0, 20), ('K', 1, 60), ('V', 0, 84), ('V', 1, 108), ('K', 2, 132)]),
       }
def kvpull(s, g):
    for s_, g_, kd, tl in KVP[opt['kvp']][0]:
        if (s_, g_ + 1) != (s, g): continue
        srd_ = sK if kd == 'K' else sV
        e(f's_xor_b32 s3, s{sXM}, {tl*16384}' if opt['xo'] else f's_mov_b32 s3, {tl*16384}')
        e(f'buffer_load_dword v{GD}, v{GK}, s[{srd_}:{srd_+3}], s3 offen{POL[opt["kvpol"]]}'); VM.add('g')

def count_in():
    wait(vm='clr')
    e(f's_cmp_eq_u32 s{sWV}, 0'); e(f's_cselect_b32 s3, 0, {OOB}')
    e('v_bfrev_b32 v30, 1'); e('v_writelane_b32 v30, s3, 0'); e(f'v_mov_b32 v3, s{sFIRST}')
    e(f'buffer_atomic_add v3, v30, s[{sD}:{sD+3}], 0 offen sc1'); VM.add('cnt')

def qproj_start():
    e(f's_mov_b32 s{sXO}, 0'); e(f's_mov_b32 s{sWQO}, 0')
    if opt['l2p'] & 2:
        for s_ in gather(0): e(s_)
    for m in range(8): emit_dma_plain(x_dma(0, m))
    for m in range(8): emit_dma_plain(w_dma(0, m))

def qproj():
    if opt['xo']:
        e('s_mov_b32 s0, 0'); e('s_mov_b32 s1, 0'); e(f's_mov_b32 s{sKO}, s{sXM}'); e(f's_mov_b32 s{sVO}, s{sXM}')
    else:
        e(f's_mov_b32 s{sKO}, 0'); e(f's_mov_b32 s{sVO}, 0')
    setup2()
    wait(vm=('X', 0))
    for qt in range(4):
        for ks in range(2): e(xread(0, qt, ks))
    wait(vm=('W', 0)); e('s_barrier')
    trace()
    for T in range(2):
        for ks in range(2):
            for h in range(2): e(wread(0, T, ks, h))
    def mfma(s, T, qt, ks):
        acc = rr(ACC(T, qt), 4)
        e(f'{MF} {acc}, {ar(WFR(T,ks),4)}, {ar(XF(s&1,qt,ks),4)}, {"0" if (s == 0 and ks == 0) else acc}')
    def dma_at(dpos, g):
        for d, kind in ((1, 's'), (0, 'g'), (-1, 'a')):
            for it in dpos.get(g + d, []):
                if it[0] == kind:
                    e(it[1])
                    if kind == 'g': VM.add(it[2])
    for s in range(7):
        dpos = {}
        if s < 7:
            dm = [x_dma(s + 2, m) for m in range(8)] + [w_dma(s + 2, m) for m in range(8)]
            if opt['nox'] & 1: dm = [[] for m in range(8)] + dm[8:]
        if s == 0:
            dm = [x_dma(1, m) for m in range(8)] + [w_dma(1, m) for m in range(8)] + dm
            for n, it in enumerate(dm): dpos[(opt['dsp0'] * n // 2) * 2 + 2] = it
            xpos = {66 + 6 * n: n for n in range(8)}
        else:
            for n, it in enumerate(dm): dpos[(n * (opt['dsp6'] if s == 6 else opt['dsp']) // 2) * 2 + 4] = it
            xpos = {8 * (6 + n) + 2: n for n in range(8)} if s < 8 else {}
        for g in range(128):
            T, qt, ks = g >> 3, (g >> 1) & 3, g & 1
            if g == 112 and s < 8:
                wait(vm=('W', s + 1), lg0=True); e('s_barrier'); trace()
            elif g & 7 == 0:
                if g == 0: wait(lg=('X', s))
                wait(lg=('W', s, T))
            if g in xpos and xpos[g] == 0: wait(vm=('X', s + 1))
            mfma(s, T, qt, ks)
            if (g & 7) < 2:
                T2, s2 = (T + 2) & 15, s + ((T + 2) >> 4)
                if s2 < 9:
                    for h in range(2): e(wread(s2, T2, g & 1, h))
            if g in xpos and not (opt['nox'] & 2 and s): e(xread(s + 1, xpos[g] >> 1, xpos[g] & 1))
            if opt['cpf'] and s == opt['cpfs'] and g == 117:
                for s_ in code_pf(f'L_att-{NAME}_kernel', 31): e(s_)
                VM.add('cpf')
            if opt['l2p'] and ((s == 0 and g == 3) or (g == opt['gpos'] + 1 and s in (1, 3, 5))):
                for s_ in gather(2 if s == 0 else s + 3): e(s_)
            if g == 119 and s == 1:
                e(f's_lshl_b32 s3, s{sNQ}, 2'); e(f's_add_u32 s3, s3, s{sFA}'); e(f's_lshl_b32 s4, s{sKQ}, 2'); e(f's_add_u32 s4, s4, s{sFC}')
                e(f's_sub_u32 s4, s4, 64'); e(f's_cmp_eq_u32 s{sWV}, 0'); e(f's_cselect_b32 s5, s{sFIRST}, 0'); e('s_lshl_b32 s5, s5, 3')
                e('v_mov_b32 v3, s4'); e('v_cmp_gt_u32 vcc, 4, v0'); e('v_mov_b32 v30, s3'); e('v_bfrev_b32 v4, 1')
                e('v_cndmask_b32 v30, v3, v30, vcc'); e('v_cmp_gt_u32 vcc, s5, v0'); e('v_lshl_add_u32 v30, v0, 4, v30'); e('v_mov_b32 v3, 0')
                e('v_cndmask_b32 v30, v4, v30, vcc')
                e(f'buffer_store_dword v3, v30, s[{sF}:{sF+3}], 0 offen sc1'); VM.add('clr')
            kvpull(s, g)
            if g == 119 and s == 3 and opt['atpos'] == 0: count_in()
            if g == opt['wogs'] and opt['wogpos'] == 2 and opt['wog']:
                if s == 0:
                    for s_ in wo_pull_pre(18 if opt['wog2'] else 12): e(s_)
                if opt['wog2']:
                    if s < 4:
                        for s_ in wo_piece(s, 18, 5, GD, opt['wogp']): et(s_)
                    if 2 <= s < 6:
                        for s_ in wo_piece(s - 2, 18, 5, GD, 0): et(s_)
                elif s < 6:
                    for s_ in wo_piece(s, 12, 5, GD, opt['wogp']): et(s_)
            dma_at(dpos, g)
    e('s_mov_b32 s58, 0x3e0293ee'); e('s_mov_b32 s59, 0x3e0293ee')
    seq = [(7, T) for T in range(8)] + [(8, T) for T in range(8)] + [(7, T) for T in range(8, 16)] + [(8, T) for T in range(8, 16)]
    dpos = {g0 + 6 * m: kv_dma(k, t, m) for k, t, g0 in KVP[opt['kvp']][1] for m in range(4)}
    assert all(g0 > 48 for k, t, g0 in KVP[opt['kvp']][1] if (k, t) == ('K', 2))
    xpos = {g: n for g, n in zip([11, 15, 19, 23, 27, 31, 35, 39], range(8))}
    cv, pend = [], []
    for qt in range(4):
        for t in range(4):
            i = qt * 4 + t
            a_, d = ACC(2 * t, qt)[1], 160 + 4 * i
            cv += [f'v_mul_f32 v{a_+j}, s58, v{a_+j}' for j in range(8)] + pend
            cv += [f'v_cvt_pk_bf16_f32 v{d+j}, v{a_+2*j}, v{a_+2*j+1}' for j in range(4)]
            pend = [f'v_permlane16_swap_b32 v{d}, v{d+2}', f'v_permlane16_swap_b32 v{d+1}, v{d+3}']
    for g in range(256):
        p_, qt, ks = g >> 3, (g >> 1) & 3, g & 1
        s, T = seq[p_]
        if g == 48:
            wait(vm=('W', 8), lg0=True); e('s_barrier'); trace()
        elif g & 7 == 0:
            if g == 0: wait(lg=('X', 7))
            wait(lg=('W', s, T))
        if g == 11: wait(vm=('X', 8))
        mfma(s, T, qt, ks)
        busy = False
        if (g & 7) < 2 and p_ + 2 < 32:
            for h in range(2): e(wread(*seq[p_ + 2], g & 1, h))
            busy = True
        if g in xpos: e(xread(8, xpos[g] >> 1, xpos[g] & 1))
        dma_at(dpos, g)
        kvpull(7, g)
        if g >= 130 and not busy:
            for _ in range(2 + (g % opt['q3'] == 0)):
                if cv: e(cv.pop(0))
    for s_ in cv: e(s_)
    trace()
    if opt['atpos'] == 1: count_in()
    for s_ in pend: e(s_)
    grp = []
    for t in range(4):
        for qt in range(4):
            n = len(grp)
            tb = 64 + (n & 1) * 8
            ds = [PARK((qt*4+t)*4 + j) for j in range(4)]
            tmp = [d[1] if d[0] == 'v' else 80 + (n & 1) * 4 + j for j, d in enumerate(ds)]
            rd = [f'v_accvgpr_read_b32 v{tb+4*o+r}, a{ACC(8+2*t+o,qt)[1]+r}' for o in range(2) for r in range(4)]
            ml = [f'v_pk_mul_f32 {vr(tb+2*j,2)}, {vr(tb+2*j,2)}, s[58:59]' for j in range(4)]
            ct = [f'v_cvt_pk_bf16_f32 v{tmp[j]}, v{tb+2*j}, v{tb+2*j+1}' for j in (0, 2, 1, 3)]
            sw = [f'v_permlane16_swap_b32 v{tmp[0]}, v{tmp[2]}', f'v_permlane16_swap_b32 v{tmp[1]}, v{tmp[3]}']
            wr = [f'v_accvgpr_write_b32 a{d[1]}, v{tmp[j]}' for j, d in enumerate(ds) if d[0] == 'a']
            grp.append((rd, ml, ct, sw, wr))
    for s_ in grp[0][0]: e(s_)
    for n in range(16):
        rd, ml, ct, sw, wr = grp[n]
        nx = grp[n + 1][0] if n < 15 else ['', '', 's_nop 1'] + [''] * 5
        pw = grp[n - 1][4] if n else []
        for s_ in ml + pw + nx[:2] + ct + nx[2:6] + sw + nx[6:]:
            if s_: e(s_)
    e('s_nop 1')
    for s_ in grp[15][4]: e(s_)
    e(f's_lshl_b32 s3, s{sWV}, 14'); e(f'v_lshl_add_u32 v{OA}, v0, 4, s3')
    e('v_mov_b32 v4, 0x3f803f80')
    for r in range(4): e(f'v_accvgpr_write_b32 a{ONES+r}, v4')

def qk(buf, kt, qt, ks, c0=False):
    c = ('0' if c0 else vr(NM(qt), 4)) if ks == 0 else vr(S(buf, kt, qt), 4)
    return f'{MF} {vr(S(buf,kt,qt),4)}, {ar(KF(kt,ks),4)}, {vr(Q(qt,ks),4)}, {c}'
def pv(pb, dt, qt, ks, first):
    c = '0' if (first and ks == 0) else ar(O(dt, qt), 4)
    return f'{MF} {ar(O(dt,qt),4)}, {ar(VF(dt&3,ks),4)}, {vr(P(pb+ks,qt),4)}, {c}'
def sm(pb, qt, ks, first):
    c = '0' if (first and ks == 0) else ar(LS(qt), 4)
    return f'{MF} {ar(LS(qt),4)}, {ar(ONES,4)}, {vr(P(pb+ks,qt),4)}, {c}'
def kread(unit, kt, ks): return f'ds_read_b128 {ar(KF(kt,ks),4)}, v{KA(ks)} offset:{(unit % 8) * 8192 + kt * 4096}'
def vread(tile, dt, ks, h): return f'ds_read_b64_tr_b16 {ar(VF(dt&3,ks)+2*h,2)}, v{VA(dt)} offset:{((tile + 2) % 4) * 16384 + (32*ks + 16*h) * 256}'
def xop(b, n):
    qt, kt, r = n >> 3, (n >> 2) & 1, n & 3
    return f'v_exp_f32 v{S(b,kt,qt)+r}, v{S(b,kt,qt)+r}'
def cop(u, n):
    qt, kt, r = n >> 2, (n >> 1) & 1, (n & 1) * 2
    return f'v_cvt_pk_bf16_f32 v{P(u&3,qt)+(n&3)}, v{S(u&1,kt,qt)+r}, v{S(u&1,kt,qt)+r+1}'

PLAN_A = ['dC', 'x', 'd', 'x', 'c', 'x', 'dd', 'g', 'x', 'c', 'x', 'dd', 'g', 'x', 'c', 'x', 'dd', 'g', 'x', 'c', 'x', '', 'g',
          'x', 'c', 'x', 'x', 'c', 'x', 'x', 'c', 'x', 'x', 'c', 'x', 'x']
PLAN_B = ['tc', 'x', 'tt', 'x', 'tc', 'x', 'tt', 'x', 'tc', 'x', 'tt', 'x', 'tc', 'x', 'tt', 'x', 'tc', 'x', 'tt', 'x', 'tc', 'x', 'x', 'c',
          'x', 'x', '', '', '', '', '', '']

STQ, GS = [], [0, -99]
def step(u, dopv=True, doqk=True, dosm=True, dovr=True, dma=None, first=False, spill=True, fills=None, sumfirst=False, half=None, both=None, vms=None):
    b = u & 1; hh = u & 1; j = u >> 1
    pb = (2 * (j - 1)) & 3
    mf = []
    for d4 in range(4):
        for qt in range(4):
            for ks in range(2): mf.append(pv(pb, 4*hh + d4, qt, ks, first) if dopv else None)
    for qt in (2*hh, 2*hh+1):
        for ks in range(2): mf.append(sm(pb, qt, ks, first) if dopv else None)
    if sumfirst: mf = mf[32:] + mf[:32]
    for kt in range(2):
        for qt in range(4):
            for ks in range(4): mf.append(qk(b ^ 1, kt, qt, ks) if doqk else None)
    plan = PLAN_A + PLAN_B
    cntx = ''.join(plan)
    assert len(PLAN_A) == 36 and len(PLAN_B) == 32
    assert [cntx.count(z) for z in 'xcdtg'] == [32, 15, 8, 16, 4]
    nx = nc = nd = nt_ = ng = 0
    vtile = (u + 1) // 2 - 1; vh = (u + 1) & 1
    korder = [(kt, ks) for kt in range(2) for ks in range(4)]
    vorder = [(d4, ks, h) for d4 in range(4) for ks in range(2) for h in range(2)]
    fills = list(fills or [])
    lastx = False
    lastv = -9
    for g in range(68):
        if g == 36 and doqk: e('s_waitcnt lgkmcnt(0)')
        if mf[g]: e(mf[g]); lastx = False
        nxt = plan[g + 1] if g + 1 < 68 else ''
        if 'g' in nxt and ng == 0 and dma: e(f's_mov_b32 m0, s{dma[1]}'); lastx = False
        used = 0
        for z in plan[g]:
            if z == 'x':
                if dosm: e(xop(b, nx)); lastx = True; used += 1
                nx += 1
            elif z == 'c':
                assert nx >= 2 * nc + 2, (g, nx, nc)
                if dosm:
                    if lastx: e('s_nop 0')
                    e(cop(u, nc)); lastx = False; used += 1
                nc += 1
            elif z == 'C':
                if spill: e(cop(u - 1, 15)); lastx = False; used += 1
            elif z == 'd':
                if doqk: e(kread(u + 1, *korder[nd])); lastx = False; used += 1
                nd += 1
            elif z == 't':
                if dovr: e(vread(vtile, 4 * vh + vorder[nt_][0], vorder[nt_][1], vorder[nt_][2])); lastx = False; used += 1
                nt_ += 1
            elif z == 'g':
                if dma:
                    if not mf[g] and ng == 0: e('s_nop 0')
                    e(dma_k(ng) if dma[0] == 'k' else dma_v(ng)); lastx = False; used += 1
                    if len(dma) > 2: VM.add(dma[2])
                ng += 1
        took = False
        if mf[g] and fills and not used and g >= 1:
            took = True
            for s_ in fills.pop(0): et(s_)
            lastx = False
        free = 0 if not mf[g] or g < 1 else 2 if not used and not took else 1 if used == 1 and plan[g] in ('c', 'd') else 0
        if mf[g]: GS[0] += 1
        if free and STQ and GS[0] - GS[1] >= opt['o1sp'] and not (free == 1 and half) and not (vms and opt['o1aft']):
            for s_ in STQ.pop(0): et(s_)
            GS[1] = GS[0]; lastv = g; free = 0; lastx = False
        if free and vms and g - lastv >= opt['vsp']:
            for s_ in vms.pop(0): et(s_)
            lastv = g; free = 0; lastx = False
        if free == 1 and half: e(half.pop(0)); lastx = False; free = 0
        while free and both: et(both.pop(0)); lastx = False; free -= 1
        if g == 62 and dma:
            r = sKO if dma[0] == 'k' else sVO
            for x in adv(r): e(x)
    return fills

def first_step(dma):
    for kt in range(2):
        for ks in range(4): e(kread(0, kt, ks))
    e(f's_mov_b32 m0, s{dma[1]}'); e('s_nop 0')
    for m in range(4): e(dma_k(m))
    for x in adv(sKO): e(x)
    e('s_mov_b32 s3, 0x7149f2ca')
    for qt in range(4):
        e(f's_cmp_eq_u32 s{sPAD}, {qt}'); e(f's_cselect_b32 s{56+qt}, s3, 0xff800000')
    e('s_waitcnt lgkmcnt(0)')
    def mx(qt):
        a, b2 = S(0, 0, qt), S(0, 1, qt)
        t = 1 + qt
        return [f'v_max3_f32 v{t}, v{a}, v{a+1}, v{a+2}', f'v_max3_f32 v{t}, v{t}, v{a+3}, v{b2}',
                f'v_max3_f32 v{t}, v{t}, v{b2+1}, v{b2+2}', f'v_max3_f32 v{t}, v{t}, v{b2+3}, v{NM(qt)}']
    for qt in range(4):
        pend = mx(qt - 2) if qt >= 2 else []
        for kt in range(2):
            for ks in range(4):
                e(qk(0, kt, qt, ks, c0=True))
                if pend and ks & 1: e(pend.pop(0))
    for s_ in mx(2): e(s_)
    e('s_nop 3')
    for s_ in mx(3): e(s_)
    for sw in ('v_permlane16_swap_b32', 'v_permlane32_swap_b32'):
        for qt in range(4): e(f'v_mov_b32 v{NM(qt)}, v{1+qt}')
        e('s_nop 0')
        for qt in range(4): e(f'{sw} v{1+qt}, v{NM(qt)}')
        e('s_nop 0')
        if sw == 'v_permlane16_swap_b32':
            for qt in range(4): e(f'v_max_f32 v{1+qt}, v{1+qt}, v{NM(qt)}')
        else:
            for qt in range(4): e(f'v_max3_f32 v{1+qt}, v{1+qt}, v{NM(qt)}, s{56+qt}')
    for qt in range(4):
        for r in range(4): e(f'v_mul_f32 v{NM(qt)+r}, -1.0, v{1+qt}')
    for qt in range(4):
        for kt in range(2):
            for r in range(4): e(f'v_add_f32 v{S(0,kt,qt)+r}, v{S(0,kt,qt)+r}, v{NM(qt)}')

def pairs(l): return [l[i:i+2] for i in range(0, len(l), 2)]

def iteration(i):
    INIT[0] = 1
    e('s_waitcnt vmcnt(16) lgkmcnt(0)')
    e('s_barrier')
    trace()
    dk, dv = ('k', sKM((i + 3) % 4)), ('v', sVM((i + 2) % 4))
    if i == 0:
        first_step(dk)
        step(0, dopv=False, dovr=False, dma=dv, spill=False)
    elif i == 1:
        step(1, dopv=False, dma=dk)
        e('s_waitcnt lgkmcnt(0)')
        step(2, dma=dv, first=True)
    elif i == 2:
        step(3, dma=dk, first=True)
        e('s_waitcnt lgkmcnt(0)')
        step(4, dma=dv)
    elif i == 16:
        mv = []
        for n in range(64):
            k, r = PARK(n)
            mv.append(f'v_mov_b32 v{160+n}, v{r}' if k == 'v' else f'v_accvgpr_read_b32 v{160+n}, a{r}')
        cn = [[f's_cmp_eq_u32 s{sWV}, 0', f's_cselect_b32 s3, 0, {OOB}'], ['v_mov_b32 v7, s3'], [f'buffer_load_dword v7, v7, s[{sD}:{sD+3}], 0 offen sc1']]
        r = step(31, doqk=False, fills=cn)
        assert not r
        e('s_waitcnt lgkmcnt(0)')
        r = step(32, doqk=False, dosm=False, fills=pairs(mv))
        assert not r
        e('s_waitcnt lgkmcnt(0)')
        r = step(33, doqk=False, dosm=False, dovr=False, spill=False, sumfirst=True, fills=[[]] * 6 + sumcheck(LF1))
        assert not r
    else:
        step(2*i - 1, dma=dk)
        e('s_waitcnt lgkmcnt(0)')
        step(2*i, dma=dv)
    INIT[0] = 0

def sumcheck(lf):
    sor = [] if opt['only'] else [f's_or_b64 s[{sFAIL}:{sFAIL+1}], s[{sFAIL}:{sFAIL+1}], vcc']
    r = [['s_mov_b32 s60, 0x4e800000', f's_mov_b64 s[{sFAIL}:{sFAIL+1}], 0']]
    for qt in range(4):
        r.append([f'v_accvgpr_read_b32 v{RC(qt)}, a{LS(qt)}', f'v_cmp_ngt_f32 vcc, s60, v{RC(qt)}'])
        r.append(sor + [f'v_max_f32 v{RC(qt)}, 0x00800000, v{RC(qt)}'])
    for qt in range(4): r.append([f'v_rcp_f32 v{RC(qt)}, v{RC(qt)}'])
    r.append([f's_cmp_lg_u64 s[{sFAIL}:{sFAIL+1}], 0', 's_cselect_b32 s60, 1, 0'])
    r.append([f's_lshl_b32 s61, s{sWV}, 2', f's_add_u32 s61, s61, {lf & ~0xffff}'])
    r.append([f'v_mov_b32 v{RC(0)+1}, s60', f'v_mov_b32 v{RC(1)+1}, s61'])
    r.append([f'ds_write_b32 v{RC(1)+1}, v{RC(0)+1} offset:{lf & 0xffff}'])
    return r

def oconv(qt, t, tb, dst, pk=1):
    r = [f'v_accvgpr_read_b32 v{tb+j}, a{O(2*t+(j>>2),qt)+(j&3)}' for j in range(8)]
    if pk: r += [f'v_pk_mul_f32 {vr(tb+2*j,2)}, {vr(tb+2*j,2)}, {vr(RC(qt),2)} op_sel_hi:[1,0]' for j in range(4)]
    else: r += [f'v_mul_f32 v{tb+j}, v{tb+j}, v{RC(qt)}' for j in range(8)]
    for j in range(4):
        d = dst(j)
        r.append(f'v_cvt_pk_bf16_f32 v{d[1] if d[0] == "v" else tb+j}, v{tb+2*j}, v{tb+2*j+1}')
    for j in range(4):
        d = dst(j)
        if d[0] == 'a': r.append(f'v_accvgpr_write_b32 a{d[1]}, v{tb+j}')
    return r

def maxpass():
    e('v_and_b32 v1, 15, v0'); e('v_lshlrev_b32 v1, 4, v1'); e(f'v_xor_b32 v5, v{KA(0)}, v1')
    e(f's_lshl_b32 s56, s{sBLK}, 18'); e('s_mov_b32 s58, 0')
    lab('L_mp')
    e('s_add_u32 s57, s56, 4096')
    for kt in range(2):
        for ks in range(4):
            e(f'buffer_load_dwordx4 {ar(KF(kt,ks),4)}, v5, s[{sK}:{sK+3}], s{56+kt} offen offset:{ks*64}')
    e('s_waitcnt vmcnt(0)')
    for qt in range(4):
        for kt in range(2):
            for ks in range(4): e(qk(0, kt, qt, ks, c0=True))
    e('s_nop 7')
    for qt in range(4):
        a, b2 = S(0, 0, qt), S(0, 1, qt)
        t = NM(qt)
        e(f'v_max3_f32 v{t}, v{t}, v{a}, v{a+1}'); e(f'v_max3_f32 v{t}, v{t}, v{a+2}, v{a+3}')
        e(f'v_max3_f32 v{t}, v{t}, v{b2}, v{b2+1}'); e(f'v_max3_f32 v{t}, v{t}, v{b2+2}, v{b2+3}')
    e('s_add_u32 s56, s56, 8192'); e('s_add_u32 s58, s58, 1'); e('s_cmp_lt_u32 s58, 32'); e('s_cbranch_scc1 L_mp')

OUTL = []
def flagcheck(name, sline, val, scalar=False):
    red = ['v_min3_u32 v2, v2, v3, v4', 'v_min_u32 v2, v2, v5', 's_nop 0', 'v_readfirstlane_b32 s3, v2', f's_cmp_ge_u32 s3, {val}']
    first = ['s_min_u32 s4, s4, s5', 's_min_u32 s6, s6, s7', 's_min_u32 s4, s4, s6', f's_cmp_ge_u32 s4, {val}'] if scalar else red
    for s_ in first: e(s_)
    e(f's_cbranch_scc0 L_spin{name}'); lab(f'L_back{name}')
    OUTL.extend([f'L_spin{name}:', 's_mov_b32 s4, 0', f'L_sp{name}:',
                 f'buffer_load_dwordx4 v[2:5], off, s[{sF}:{sF+3}], s{sline} sc1', 's_waitcnt vmcnt(0)'] + red +
                [f's_cbranch_scc1 L_back{name}', 's_add_u32 s4, s4, 1', f's_cmp_lt_u32 s4, {1 << opt["spin"]}', f's_cbranch_scc1 L_sp{name}', f's_branch L_back{name}'])

def wo_dma(s, i):
    r = []
    if i == 0:
        d, blk = STG[s]
        r.append(f's_add_u32 s{sWOO}, s{sWH(d)}, {blk*147456}')
    if i & 3 == 0: r.append(f's_add_u32 m0, s{sW9}, {W3SLOT[s % 3] + (i >> 2) * 4096}' if s % 3 < 2 else f's_add_u32 m0, s{sWC}, {(i >> 2) * 4096}')
    return r, f'buffer_load_dwordx4 v{WOA[i]}, s[{sWO}:{sWO+3}], s{sWOO} offen offset:{(i&3)*1024}{POL[opt["wont"]]} lds'
def dma_groups(s):
    gs = [[]]
    for i in range(9):
        pre, ld = wo_dma(s, i)
        gs[-1].extend(pre); gs.append([(ld, ('W3', s))])
    return gs

def attention():
    lab('L_att')
    e(f's_mov_b32 s{sBLK}, 0'); e(f's_mov_b32 s{sEXIT}, 99')
    lab('L_block')
    for qt in range(4): e(f'v_mov_b32 v{NM(qt)}, 0xff800000')
    e(f's_cmp_eq_u32 s{sSAFE}, 0'); e('s_cbranch_scc1 L_nomp')
    maxpass()
    lab('L_nomp')
    iteration(0); iteration(1); iteration(2)
    e(f's_mov_b32 s{sLOOP}, 0')
    e('s_branch L_it3')
    L.append('.p2align 6')
    lab('L_loop')
    iteration(4)
    e(f's_cmp_eq_u32 s{sLOOP}, s{sEXIT}'); e('s_cbranch_scc1 L_tail')
    iteration(5); iteration(6)
    lab('L_it3')
    iteration(7)
    e(f's_add_u32 s{sLOOP}, s{sLOOP}, 1'); e(f's_cmp_lt_u32 s{sLOOP}, 4'); e('s_cbranch_scc1 L_loop')
    iteration(16)
    n = 0
    for t in range(4):
        for qt in range(4):
            for s_ in oconv(qt, t, 32 + (n & 1) * 8, lambda j: PARK((qt*4+t)*4 + j)): e(s_)
            n += 1
    e(f's_mov_b32 s{sBLK}, 1'); e(f's_mov_b32 s{sEXIT}, 3')
    e('s_branch L_block')

def wo_pull_pre(n, va=5):
    return [f's_lshl_b32 s3, s{sB}, 2', f's_add_u32 s3, s3, s{sNQ}', 's_mul_i32 s3, s3, 36864', f's_add_u32 s3, s3, s{sW9}',
            f'v_cmp_gt_u32 vcc, {n}, v0', f'v_lshl_add_u32 v{va}, v0, 7, s3', 'v_bfrev_b32 v3, 1', f'v_cndmask_b32 v{va}, v3, v{va}, vcc']
def wo_piece(k, n, va, dst, pol):
    return [f's_mov_b32 s63, {k*n*128}', (f'buffer_load_dword v{dst}, v{va}, s[{sWO}:{sWO+3}], s63 offen{POL[pol]}', 'g')]

def post(tag, val):
    wait(vm=tag); e(f'v_mov_b32 v2, {val}'); e(f'buffer_store_dword v2, v{FAD}, s[{sF}:{sF+3}], 0 offen{POL[opt["fpol"]]}'); VM.add('flag')

def tail():
    L.append('.p2align 6')
    lab('L_tail')
    INIT[0] = 1
    VM.q = [10] * 8 + [11] * 8 + [12] * 8
    e('v_readfirstlane_b32 s3, v7'); e(f's_cmp_lg_u32 s{sWV}, 0'); e('s_cselect_b32 s3, 256, s3')
    e('s_cmp_ge_u32 s3, 256'); e('s_cbranch_scc0 L_spinD'); lab('L_backD')
    OUTL.extend(['L_spinD:', 's_mov_b32 s4, 0', 'L_spD:', f'buffer_load_dword v7, off, s[{sD}:{sD+3}], 0 sc1', 's_waitcnt vmcnt(0)',
                 'v_readfirstlane_b32 s3, v7', 's_cmp_ge_u32 s3, 256', 's_cbranch_scc1 L_backD',
                 's_add_u32 s4, s4, 1', f's_cmp_lt_u32 s4, {1 << opt["spin"]}', 's_cbranch_scc1 L_spD', 's_branch L_backD'])
    wait(vm=10, lg0=True); e('s_barrier'); trace()
    e(f'v_mov_b32 v2, {LF1 & ~0xffff}'); e(f'ds_read_b128 v[20:23], v2 offset:{LF1 & 0xffff}')
    st = []
    for t in range(4):
        for u in range(4):
            pre = [f's_lshl_b32 s{sOS}, s{sNQ}, 17'] if t + u == 0 else [f's_add_u32 s{sOS}, s{sOS}, 4096'] if u == 0 else []
            st.append(pre + [(f'buffer_store_dwordx4 {rr(PARK((u*4+t)*4),4)}, v{OA}, s[{sO}:{sO+3}], s{sOS} offen offset:{u*1024}{POL[opt["opol"]]}', ('O1', t >> 1))])
    def stores(u):
        if u == opt['o1st'] and not opt['nost'] & 1: STQ.extend(st)
    stores(25)
    pl = opt['wog'] and opt['wogpos'] == 3
    np_ = opt['wogn']
    pcs = [wo_piece(k, 72 // np_, 1, 5, opt['wogp']) for k in range(np_)] if pl else []
    pc2 = [wo_piece(k, 72 // np_, 1, 5, 0) for k in range(np_)] if pl and opt['wog2'] else []
    h = wo_pull_pre(72 // np_, 1) if pl else []
    k1 = np_ // 3
    if opt['early']:
        for s_ in h: e(s_)
        rest = step(25, dma=('v', sVM(15 % 4), 'V15'), vms=pcs)
        assert not pcs
    else:
        rest = step(25, half=h, fills=[[]] * 5 + sum([[x, []] for x in pcs[:k1]], []))
        assert not h and not rest
    e('s_waitcnt lgkmcnt(0)')
    h = ['v_or3_b32 v2, v20, v21, v22', 'v_or_b32 v2, v2, v23', 's_nop 0', f'v_readfirstlane_b32 s{sF1}, v2']
    gp = []
    stores(26)
    if opt['cpf']:
        cp = code_pf(f'L_op-{NAME}_kernel', 6, 'v5', 6)
        h += cp[:6]; gp = [[], [cp[6], (cp[7], 'g'), cp[8]]]
    rest = step(26, dma=None if opt['early'] else ('v', sVM(15 % 4), 'V15'), fills=([[]] * 4 if opt['early'] else []) + gp + sum([[[], x] for x in pcs[k1:2*k1]], []), half=h)
    assert not h and not rest
    wait(vm=11, lg0=True); e('s_barrier'); trace()
    ad = ['v_mul_u32_u24 v2, 3641, v0', 'v_lshrrev_b32 v2, 16, v2', 'v_mul_u32_u24 v3, 18, v2', 'v_sub_u32 v3, v0, v3',
          f's_mul_i32 s3, s{sNQ}, 288', f's_lshl_b32 s4, s{sW9}, 2', 's_add_u32 s3, s3, s4',
          'v_mul_u32_u24 v2, 1152, v2', 'v_lshl_add_u32 v2, v3, 4, v2', 'v_add_u32 v2, s3, v2', 'v_add_u32 v4, 864, v2']
    ad2 = []
    for i in range(9):
        R, c = divmod(64 * i, 18)
        ad2 += [[f'v_cmp_gt_u32 s[{4+2*(i&1)}:{5+2*(i&1)}], {18 - c}, v3'],
                [f'v_cndmask_b32 v{WOA[i]}, v4, v2, s[{4+2*(i&1)}:{5+2*(i&1)}]', f'v_add_u32 v{WOA[i]}, {R*1152 + c*16 - (i&3)*1024}, v{WOA[i]}']]
    seq = ad2[0] + ad2[2] + ['s_nop 0']
    for i in range(9): seq += ad2[2*i+1] + (ad2[2*i+4] if i + 2 < 9 else [])
    sd = lambda d: [f's_add_u32 s3, s{sNQ}, {d}', 's_and_b32 s3, s3, 3', f's_mul_i32 s{sWH(d)}, s3, 294912', f's_lshl_b32 s{sOH(d)}, s3, 17']
    ad = ad + seq
    stores(27)
    rest = step(27, fills=pcs[2*k1:], both=ad)
    assert not rest
    e('s_waitcnt lgkmcnt(0)')
    ad += [f's_mul_i32 s{sWH(0)}, s{sNQ}, 294912', f's_lshl_b32 s{sOH(0)}, s{sNQ}, 17'] + sd(1)
    ad += [f's_add_u32 s{sWC}, s{sW9}, {135168 - 9216}', f's_cmp_eq_u32 s{sWV}, 0', f's_cselect_b32 s{sWC}, 36864, s{sWC}']
    stores(28)
    rest = step(28, both=ad, fills=pc2)
    assert not rest
    for s_ in ad: e(s_)
    e(f's_andn2_b32 s{sF1}, s{sF1}, s{sSAFE}'); e(f's_cmp_lg_u32 s{sF1}, 0'); e('s_cbranch_scc1 L_redo')
    wait(vm=12, lg0=True); e('s_barrier'); trace()
    d0, d1 = dma_groups(0), dma_groups(1)
    for s_ in d0[0]: e(s_)
    d2 = dma_groups(2)
    d0[-1] += d1[0]; d1[-1] += d2[0]
    vms = d0[1:] + d1[1:] + d2[1:]
    stores(29)
    step(29, vms=vms)
    e('s_waitcnt lgkmcnt(0)'); trace_at(62)
    stores(30)
    step(30, vms=vms)
    wait(vm='V15', lg0=True); e('s_barrier'); trace()
    stores(31)
    sds = sd(2) + sd(3)
    step(31, doqk=False, vms=vms, both=sds)
    e('s_waitcnt lgkmcnt(0)')
    ad = ['v_lshrrev_b32 v2, 2, v0', 'v_mul_u32_u24 v2, 288, v2', 'v_and_b32 v3, 3, v0', f'v_lshl_add_u32 v{WR(0)}, v3, 3, v2',
          f'v_add_u32 v{WR(1)}, {W3SLOT[1]}, v{WR(0)}',
          f's_lshl_b32 s3, s{sNQ}, 2', f's_add_u32 s3, s3, s{sFA}', f'v_bfrev_b32 v{FAD}, 1', f'v_writelane_b32 v{FAD}, s3, 0']
    ad = sds + ad
    step(32, doqk=False, dosm=False, vms=vms, both=ad)
    assert not vms and not ad
    e('s_waitcnt lgkmcnt(0)')
    if opt['postA1'] < 0: post(('O1', 0), 1)
    rest = step(33, doqk=False, dosm=False, dovr=False, spill=False, sumfirst=True, fills=[[]] * 6 + sumcheck(LF2))
    assert not rest
    INIT[0] = 0
    for g_ in STQ:
        for s_ in g_: et(s_)
    STQ.clear()
    wait(vm=('W3', 0), lg0=True); e('s_barrier'); trace()

MORD = [3, 2, 1, 4, 0] if opt['mord'] else [0, 1, 2, 3, 4]
NORD = sum([[2 * m, 2 * m + 1][:2 - (m >> 2)] for m in MORD], [])
def tmap(s, T):
    return (T & 1, NORD[T >> 1]) if s == 7 else divmod(T, 9)
WFD = lambda i, kk: 160 + (i & 7) * 8 + kk * 4
def w3read(s, T, kk, h, i=None):
    kp, n = tmap(s, T) if i is None else T
    ks, sl = 2 * kp + kk, s % 3
    off = ks * 9216 + h * 4608 + n * 32
    if sl == 2: sl, off = (0, off + 36864) if ks == 0 else (1, off + 36864 - 9216)
    if i is not None:
        LG.add(('WD', i))
        return f'ds_read_b64_tr_b16 {vr(WFD(i,kk)+2*h,2)}, v{WR(sl)} offset:{off}'
    LG.add(('W3', s, T))
    return f'ds_read_b64_tr_b16 {ar(WF3(s*18+T,kk)+2*h,2)}, v{WR(sl)} offset:{off}'

def oproj():
    lab('L_op')
    LG.q = []
    e(f'v_mov_b32 v3, {LF2 & ~0xffff}'); e(f'ds_read_b128 v[236:239], v3 offset:{LF2 & 0xffff}'); LG.add('f2')
    for T in range(2):
        for kk in range(2):
            for h in range(2): e(w3read(0, T, kk, h))
    cv = []
    n = 0
    o2 = []
    for t in range(4):
        for u in range(4):
            cv += oconv(u, t, 12 if n & 1 else 228 + 4, lambda j: ('v', 160 + (u*4+t)*4 + j), opt['pkmul']); n += 1
            pre = [f's_add_u32 s{sOS}, s{sOH(0)}, {65536 + t*4096}'] if u == 0 else []
            it = (pre, f'buffer_store_dwordx4 {rr(OF(1,t,u),4)}, v{OA}, s[{sO}:{sO+3}], s{sOS} offen offset:{u*1024}{POL[opt["opol"]]}', ('O2', t >> 1))
            if not opt['nost'] & 2: cv.append(lambda it=it: o2.append(it))
    f2 = ['v_or3_b32 v236, v236, v237, v238', 'v_or_b32 v236, v236, v239', 's_nop 0', f'v_readfirstlane_b32 s{sF1}, v236']
    cv = f2 + cv
    late = []
    lastst = -99
    D, LA = opt['dfr'], opt['dla']
    poll = (f'buffer_load_dwordx4 v[2:5], off, s[{sF}:{sF+3}], s{sFC} sc1', 'poll')
    dq = [(s, kp, n) for n in range(9) for s in range(8 - D, 8) for kp in range(2)]
    for s in range(8):
        vm = []
        if 1 <= s < 7:
            d, blk = STG[s + 1]
            for ks in range(4):
                for u in range(4):
                    pre = [f's_add_u32 s{sOT(ks)}, s{sOH(d)}, {blk*65536 + ks*4096}'] if u == 0 else []
                    vm.append((pre, f'buffer_load_dwordx4 {rr(OF(s+1,ks,u),4)}, v{OA}, s[{sO}:{sO+3}], s{sOT(ks)} offen offset:{u*1024}{POL[opt["olp"]]}', ('O', s + 1, ks >> 1)))
        wl = [wo_dma(s + 2, i) + (('W3', s + 2),) for i in range(9)] if 1 <= s < 6 else []
        al = vm + wl
        TS = 6 if s >= 8 - D else 8
        NG = 18 * TS
        span = (100 if s == 6 else 138) * TS // 8
        pos = {2 + (n * span) // max(len(al), 1): it for n, it in enumerate(al)}
        if s in (1, 4):
            pos = {2 + 5 * n: it for n, it in enumerate(vm[:8] + wl)}
            pos.update({90 + 6 * n: it for n, it in enumerate(vm[8:])})
        pos2 = {}
        for g, it in sorted(pos.items()):
            while g % TS < 2 or g in pos2: g += 1
            pos2[g] = it
        pos = pos2
        assert not pos or max(pos) < NG, (s, max(pos))
        if s == 5:
            late = [f's_mul_i32 s3, s{sWV}, 5120', f'v_lshl_add_u32 v{RA(0)}, v0, 4, s3', 's_add_u32 s3, s3, 4096', f'v_lshl_add_u32 v{RA(1)}, v0, 3, s3']
            for u in range(1, 4):
                late += [f's_add_u32 s3, s{sKQ}, {u}', 's_and_b32 s3, s3, 3', f's_mul_i32 s3, s3, {RSZ//4}', f's_add_u32 s{sRS(u)}, s3, {(u-1)*20480}']
            late += [f's_mul_i32 s{sRL(1)}, s{sKQ}, {RSZ//4}', f's_add_u32 s{sRL(2)}, s{sRL(1)}, 20480', f's_add_u32 s{sRL(3)}, s{sRL(1)}, 40960']
            late += [f's_mul_i32 s3, s{sB}, 240', f's_lshl_b32 s4, s{sWV}, 6', 's_add_u32 s3, s3, s4', f's_lshl_b32 s4, s{sKQ}, 4', 's_add_u32 s3, s3, s4',
                     's_mul_i32 s3, s3, 2304', f's_mul_i32 s4, s{sP}, 1152', 's_add_u32 s3, s3, s4', f's_mul_i32 s4, s{sNQ}, 288', 's_add_u32 s3, s3, s4',
                     f's_cmp_eq_u32 s{sPAD}, 0', f's_cselect_b32 s3, {OOB}, s3',
                     'v_and_b32 v17, 15, v0', 'v_mul_u32_u24 v17, 2304, v17', 'v_add_u32 v17, s3, v17', 'v_lshrrev_b32 v18, 4, v0',
                     f'v_lshl_add_u32 v{OUTB}, v18, 3, v17', 'v_and_b32 v19, 1, v18', 'v_lshl_add_u32 v17, v19, 5, v17', 'v_lshrrev_b32 v18, 1, v18',
                     f'v_lshl_add_u32 v{OUTA}, v18, 4, v17',
                     f's_lshl_b32 s3, s{sKQ}, 2', f's_add_u32 s3, s3, s{sFC}', f'v_writelane_b32 v{FAD}, s3, 0']
        def send(m, u):
            r = []
            src = []
            for n in range(2 * m, min(2 * m + 2, 9)):
                k, a = ACC3(n, u)
                if k == 'a':
                    t = 224 + 4 * (n - 5)
                    r += [f'v_accvgpr_read_b32 v{t+j}, a{a+j}' for j in range(4)]; a = t
                src.append(a)
            d = src[0]
            for i, a in enumerate(src): r += [f'v_cvt_pk_bf16_f32 v{d+2*i+j}, v{a+2*j}, v{a+2*j+1}' for j in range(2)]
            if m < 4: r.append((f'buffer_store_dwordx4 {vr(d,4)}, v{RA(0)}, s[{sR}:{sR+3}], s{sRS(u)} offen offset:{m*1024} sc1', 'snd'))
            else: r.append((f'buffer_store_dwordx2 {vr(d,2)}, v{RA(1)}, s[{sR}:{sR+3}], s{sRS(u)} offen sc1', 'snd'))
            return r
        for g in range(NG):
            T, u, kk = g // TS, (g % TS >> 1) + (TS == 6), g & 1
            kp, n = tmap(s, T)
            if g == 16 * TS and s < 7:
                wait(vm=('W3', s + 1), lg0=True)
                if s == 0:
                    e(f's_andn2_b32 s{sF1}, s{sF1}, s{sSAFE}'); e(f's_cmp_lg_u32 s{sF1}, 0'); e('s_cbranch_scc1 L_redo')
                e('s_barrier'); trace()
                if s in (0, 3): flagcheck('AB'[s // 3] + '1', sFA, 1 + 2 * (s // 3), True); trace_at(58 + s)
            elif s in (1, 4) and g == 88:
                wait(lg0=True); flagcheck('AB'[s // 3] + '2', sFA, 2 + 2 * (s // 3), True)
            elif g % TS == 0:
                if s == 7 and g == 0: wait(vm=('O', s, 1), lg=('W3', s, T))
                elif s >= 2 and T in (0, 9): wait(vm=('O', s, T // 9), lg=('W3', s, T))
                else: wait(lg=('W3', s, T))
            gg = s * 144 + g
            if gg == opt['postA1']: post(('O1', 0), 1)
            if gg == opt['postA']: post(('O1', 1), 2); trace_at(57)
            if gg == opt['postB1']: assert len(o2) <= 8 and not cv; post(('O2', 0), 3)
            if gg == opt['postB2']: assert not o2; post(('O2', 1), 4)
            if (s, g) == (1, 40): trace_at(59)
            if (s, g) == (1, 80): trace_at(60)
            acc = rr(ACC3(n, u), 4)
            c = '0' if (s == 0 and kp == 0 and kk == 0) else acc
            e(f'{MF} {acc}, {ar(WF3(s*18+T,kk),4)}, {rr(OF(s,2*kp+kk,u),4)}, {c}')
            busy = False
            if g % TS < 2:
                T2, s2 = (T + 2) % 18, s + (T + 2) // 18
                if s2 < 8:
                    for h in range(2): e(w3read(s2, T2, g & 1, h))
                    busy = True
            if D and s == 7 and T >= 16:
                i = (T - 16) * (LA // 2) + (g % TS >> 1)
                if g % TS < LA:
                    for h in range(2): e(w3read(dq[i][0], dq[i][1:], g & 1, h, i))
                    busy = True
            if g + 1 in pos:
                for s_ in pos[g + 1][0]: e(s_)
            if g in pos:
                e(pos[g][1]); VM.add(pos[g][2]); busy = True
            if (s, g) in ((0, 100), (1, 60), (3, 100), (4, 60)):
                e(f's_buffer_load_dwordx4 s[4:7], s[{sF}:{sF+3}], s{sFA} glc')
            if o2 and not busy and gg >= opt['o2pos'] and gg - lastst >= opt['o2sp']:
                it = o2.pop(0)
                for s_ in it[0]: e(s_)
                e(it[1]); VM.add(it[2]); busy = True; lastst = gg
            if D and s == 7 and g == opt['dfp'] and opt['df2'] < 2: late.append(poll)
            if s == 7 and g % (2 * TS) == 2 and g > 2 and (NORD[T // 2 - 1] & 1 or NORD[T // 2 - 1] == 8):
                for u2 in (1, 2, 3): late += send(NORD[T // 2 - 1] >> 1, u2)
            if not busy and g >= 2:
                src = cv if cv else late
                k = 0
                while src and k < ((opt['cvn'] + (g & 1)) // 2 if cv else 2):
                    x = src.pop(0)
                    if isinstance(x, tuple) and k >= 1: src.insert(0, x); break
                    et(x)
                    k += 0 if callable(x) else 2 if isinstance(x, tuple) else 1
            if s == 1 and g == 70: assert not cv, len(cv)
    trace()
    IN = lambda m, u: 68 + (m * 3 + u - 1) * 4
    fetch = [(f'buffer_load_dwordx4 {vr(IN(m,u),4)}, v{RA(0)}, s[{sR}:{sR+3}], s{sRL(u)} offen offset:{m*1024} sc1' if m < 4 else
              f'buffer_load_dwordx2 {vr(IN(m,u),2)}, v{RA(1)}, s[{sR}:{sR+3}], s{sRL(u)} offen sc1', m) for m in range(5) for u in (1, 2, 3)]
    def hand_over():
        e('v_mov_b32 v6, 1')
        e('s_waitcnt vmcnt(0)')
        e(f'buffer_store_dword v6, v{FAD}, s[{sF}:{sF+3}], 0 offen sc1')
        trace()
        if not D: e(poll[0]); e('s_waitcnt vmcnt(0)')
        elif opt['df2'] < 2:
            for j in range(4): e(f'v_max_u32 v{2+j}, s{56+j}, v{2+j}')
        if D and opt['df2'] == 2: return
        if D and opt['df2']:
            for s_ in ['v_min3_u32 v2, v2, v3, v4', 'v_min_u32 v2, v2, v5', 's_nop 0', 'v_readfirstlane_b32 s60, v2', 's_cmp_ge_u32 s60, 1', 's_cbranch_scc0 L_later']: e(s_)
            for s_ in fetch: e(s_[0])
            lab('L_later')
            return
        flagcheck('C', sFC, 1)
        trace()
        VM.q = []
    if not D:
        for s_ in late: et(s_)
        e('s_nop 4')
        for u2 in (1, 2, 3):
            for s_ in send(MORD[4], u2): et(s_)
        hand_over()
        for s_ in fetch: et(s_)
    else:
        got = False
        PR = [2, 20, 28]
        pl = lambda r: f'buffer_load_dwordx4 {vr(r,4)}, off, s[{sF}:{sF+3}], s{sFC} sc1'
        for g in range(2 * len(dq)):
            i, kk = g >> 1, g & 1
            s, kp, n = dq[i]
            if kk == 0: wait(lg=('WD', i))
            if g == opt['dfx']:
                assert not late and polled
                hand_over(); late = list(fetch); got = True
                if opt['df2']: late = []
                if opt['dfb']:
                    for s_ in late: et(s_)
                    late = []
            acc = rr(ACC3(n, 0), 4)
            e(f'{MF} {acc}, {vr(WFD(i,kk),4)}, {rr(OF(s,2*kp+kk,0),4)}, {acc}')
            if i + LA < len(dq):
                for h in range(2): e(w3read(dq[i+LA][0], dq[i+LA][1:], kk, h, i + LA))
            if g == 2:
                for u2 in (1, 2, 3): late += send(MORD[4], u2)
                if opt['dfp'] < 0: late.append(poll)
                polled = True
                for j in range(4): late += [f's_cmp_eq_u32 s{sKQ}, {j}', f's_cselect_b32 s{56+j}, 1, 0']
            for _ in range(opt['dfv']):
                if late: et(late.pop(0))
            if opt['df2'] == 2:
                for j, r in enumerate(PR):
                    if g == 2 * len(dq) - 1 - (2 - j) * opt['dfs'] - opt['dfe']:
                        assert got
                        e(pl(r))
        assert got
        for s_ in late: et(s_)
        trace_at(63)
        if opt['df2'] == 2:
            e('s_mov_b32 s4, 0'); lab('L_spC')
            for r in PR:
                e('s_waitcnt vmcnt(2)')
                for j in range(4): e(f'v_max_u32 v{r+j}, s{56+j}, v{r+j}')
                for s_ in [f'v_min3_u32 v7, v{r}, v{r+1}, v{r+2}', f'v_min_u32 v7, v7, v{r+3}', 's_nop 0', 'v_readfirstlane_b32 s3, v7', 's_cmp_ge_u32 s3, 1', 's_cbranch_scc1 L_have', pl(r)]: e(s_)
            e('s_add_u32 s4, s4, 1'); e(f's_cmp_lt_u32 s4, {1 << opt["spin"]}'); e('s_cbranch_scc1 L_spC')
            lab('L_have')
            trace()
            VM.q = []
            for s_ in fetch: et(s_)
        elif opt['df2']:
            e('s_cmp_ge_u32 s60, 1'); e('s_cbranch_scc1 L_have')
            e(poll[0]); e('s_waitcnt vmcnt(0)')
            flagcheck('C', sFC, 1)
            for s_ in fetch: e(s_[0])
            lab('L_have')
            trace()
            VM.q = [s_[1] for s_ in fetch]
    e('s_mov_b32 s4, 0x3f80'); e('s_mov_b32 s5, 0x3f800000')
    for m in range(5):
        wait(vm=m)
        d = 180 + m * 4
        ns = range(2 * m, min(2 * m + 2, 9))
        for u in (1, 2, 3):
            for n in ns:
                a = ACC3(n, 0)[1]
                for r in range(4): e(f'v_dot2c_f32_bf16 v{a+r}, s{4 + (r&1)}, v{IN(m,u) + 2*(n&1) + (r>>1)}')
        e('s_nop 1')
        for n in ns:
            a = ACC3(n, 0)[1]
            for j in range(2): e(f'v_cvt_pk_bf16_f32 v{d+2*(n&1)+j}, v{a+2*j}, v{a+2*j+1}')
        if m < 4:
            e('s_nop 1')
            e(f'v_permlane16_swap_b32 v{d}, v{d+2}'); e(f'v_permlane16_swap_b32 v{d+1}, v{d+3}')
            e(f'buffer_store_dwordx4 {vr(d,4)}, v{OUTA}, s[{sOut}:{sOut+3}], 0 offen offset:{m*64}{POL[opt["outp"]]}'); VM.add('out')
        else:
            e(f'buffer_store_dwordx2 {vr(d,2)}, v{OUTB}, s[{sOut}:{sOut+3}], 0 offen offset:256{POL[opt["outp"]]}')

def descriptor(name, vg=512):
    return f'''.amdhsa_kernel {name}
  .amdhsa_next_free_vgpr {vg}
  .amdhsa_next_free_sgpr 102
  .amdhsa_accum_offset 256
  .amdhsa_group_segment_fixed_size 0
  .amdhsa_kernarg_size 104
  .amdhsa_user_sgpr_count 2
  .amdhsa_user_sgpr_kernarg_segment_ptr 1
  .amdhsa_system_sgpr_workgroup_id_x 1
.end_amdhsa_kernel'''

L.append(f'''; one launch: projection of q, attention (two heads per workgroup), output projection over eight heads, four-way sum
; @launch grid=(256,1,1) block=(256,1,1) lds=163840
.amdgcn_target "amdgcn-amd-amdhsa--gfx950"
.text
.globl {NAME}_kernel
.p2align 8
.type {NAME}_kernel,@function
{NAME}_kernel:''')
setup1()
qproj_start()
vmq = list(VM.q)
setup1b()
lab('L_go')
qproj()
attention()
tail()
oproj()
if opt['trace']:
    trace()
    e('s_lshl_b32 s3, s2, 2'); e(f's_add_u32 s3, s3, s{sWV}'); e('s_lshl_b32 s3, s3, 8')
    e('v_lshl_add_u32 v8, v0, 2, s3')
    e(f'buffer_store_dword v27, v8, s[{sST}:{sST+3}], 0 offen')
e('s_endpgm')
lab('L_redo')
e(f's_mov_b32 s{sSAFE}, 1'); e(f's_mov_b32 s{sFIRST}, 0'); e('s_waitcnt vmcnt(0) lgkmcnt(0)'); e('s_barrier')
e('v_and_b32 v1, 15, v0'); e('v_lshrrev_b32 v2, 4, v0')
staging()
VM.q = []
qproj_start()
assert VM.q == vmq
e('s_branch L_go')
for s_ in OUTL:
    if s_.endswith(':'): L.append(s_)
    else: e(s_)
lab('L_end')
e('s_endpgm')
L.append('.section .rodata,"a"\n.p2align 6\n' + descriptor(NAME + '_kernel'))
open(sys.argv[1], 'w').write('\n'.join(L) + '\n')
```
